```python
import torch

def _softmax(x, axis=-1):
    return torch.softmax(x, dim=axis)
def _gelu(x):
    return torch.nn.functional.gelu(x, approximate="tanh")
def _silu(x):
    return torch.nn.functional.silu(x)
def _sigmoid(x):
    return torch.sigmoid(x)
def _layernorm(x, axis=-1, eps=1e-5):
    m = x.mean(dim=axis, keepdim=True)
    v = x.var(dim=axis, keepdim=True, unbiased=False)
    return (x - m) / torch.sqrt(v + eps)
def _scatter_add(tgt, idx, src, axis=0):
    return tgt.clone().index_add_(axis, idx, src)
def _segment_sum(src, seg, n):
    out = torch.zeros((n,) + src.shape[1:], dtype=src.dtype)
    return out.index_add_(0, seg, src)
def _pad(x, pw):
    flat = tuple(v for pair in reversed(pw) for v in pair)
    return torch.nn.functional.pad(x, flat)

kernel_name = 'standalone__mha_block_cached__near_ridge'

def setup_inputs():

    _w = (lambda a: (lambda t: t.to(torch.bfloat16) if t.is_floating_point() else t)(torch.as_tensor(a)))
    B, Sq, D = 16, 96, 640
    H, Sk, Dh = 32, 1024, 192
    return {
        "x": _w((lambda *s: torch.randn(*s, dtype=torch.bfloat16) * 0.8)(B, Sq, D)),
        "k_cache": _w((lambda *s: torch.randn(*s, dtype=torch.bfloat16) * 0.8)(B, H, Sk, Dh)),
        "v_cache": _w((lambda *s: torch.randn(*s, dtype=torch.bfloat16) * 0.05)(B, H, Sk, Dh)),
        "wq": _w((lambda *s: torch.randn(*s, dtype=torch.bfloat16) * 0.8)(D, H * Dh) * (D ** -0.5)),
        "wo": _w((lambda *s: torch.randn(*s, dtype=torch.bfloat16) * 0.05)(H * Dh, D) * ((H * Dh) ** -0.5)),
    }

def reference(x, k_cache, v_cache, wq, wo):
    B, Sq, D = x.shape
    H, Dh = 32, 192
    q = (lambda x, *d: x.permute(*d))((x @ wq).reshape(B, Sq, H, Dh), 0, 2, 1, 3)
    scores = torch.einsum("bhqd,bhkd->bhqk", q, k_cache) * (Dh ** -0.5)
    p = _softmax(scores, axis=-1)
    o = torch.einsum("bhqk,bhkd->bhqd", p, v_cache)
    return (lambda x, *d: x.permute(*d))(o, 0, 2, 1, 3).reshape(B, Sq, H * Dh) @ wo
```

```python
import math
import struct
import sys

OUT = "standalone__mha_block_cached__near_ridge.s"

HEADER = open("standalone__mha_block_cached__near_ridge.s.ref").read().split("; Override launch geometry")[0]

MAIN = "standalone__mha_block_cached__near_ridge_kernel"


def f32bits(x):
    return struct.unpack("<I", struct.pack("<f", x))[0]


class Asm:
    def __init__(self):
        self.lines = []

    def __call__(self, s):
        self.lines.append("    " + s)

    def label(self, l):
        self.lines.append(l + ":")

    def raw(self, s):
        self.lines.append(s)

    def text(self):
        return "\n".join(self.lines) + "\n"


def vr(a, n):
    return f"v[{a}:{a + n - 1}]"


def srd(a, base, nbytes, sreg):
    a(f"s_mov_b32 s{sreg}, s{base}")
    a(f"s_and_b32 s{sreg + 1}, s{base + 1}, 0xffff")
    a(f"s_mov_b32 s{sreg + 2}, {nbytes}")
    a(f"s_mov_b32 s{sreg + 3}, 0x00020000")


def rolling(a, items, window, nslots_reads=None):
    n = len(items)
    nr = [len(it[0]) for it in items]
    for f in range(min(window, n)):
        for r in items[f][0]:
            a(r)
    for f in range(n):
        if f + window < n:
            for r in items[f + window][0]:
                a(r)
        last = min(f + window, n - 1)
        outstanding = sum(nr[f + 1:last + 1])
        assert outstanding <= 15
        a(f"s_waitcnt lgkmcnt({outstanding})")
        a(items[f][1])


SLOT = 24576
NSLOT = 3
NW = 10
NKV = 32
NST = NW + NKV


def gen_attn(a):
    a.raw(f".globl {MAIN}")
    a.raw(".p2align 8")
    a.raw(f".type {MAIN},@function")
    a.label(MAIN)
    a("s_cmp_ge_u32 s2, 512")
    a("s_cbranch_scc1 L1_end")
    a("s_load_dwordx8 s[28:35], s[0:1], 0")
    a("s_load_dwordx2 s[36:37], s[0:1], 56")
    a("v_lshrrev_b32 v1, 6, v0")
    a("v_and_b32 v2, 63, v0")
    a("v_readfirstlane_b32 s40, v1")
    a("s_lshr_b32 s38, s2, 5")
    a("s_and_b32 s39, s2, 31")
    a("s_waitcnt lgkmcnt(0)")
    srd(a, 28, 1966080, 8)
    srd(a, 30, 201326592, 12)
    srd(a, 32, 201326592, 16)
    srd(a, 34, 7864320, 20)
    srd(a, 36, 18874368, 24)
    a("s_cmp_eq_u32 s40, 3")
    a("s_cbranch_scc0 L1_compute")

    for jj in range(6):
        a(f"v_add_u32 v3, {64 * jj}, v2")
        a("v_mul_u32_u24 v4, 0xaab, v3")
        a("v_lshrrev_b32 v4, 16, v4")
        a("v_mul_u32_u24 v5, 24, v4")
        a("v_sub_u32 v5, v3, v5")
        a("v_lshrrev_b32 v6, 1, v4")
        a("v_and_b32 v7, 7, v6")
        a("v_xor_b32 v7, v7, v5")
        a("v_lshlrev_b32 v7, 4, v7")
        a("v_mul_u32_u24 v8, 0x180, v4")
        a(f"v_add_u32 v{10 + jj}, v7, v8")
        if jj < 3:
            a("v_and_b32 v7, 1, v6")
            a("v_lshlrev_b32 v7, 2, v7")
            a("v_xor_b32 v7, v7, v5")
            a("v_lshlrev_b32 v7, 4, v7")
            a(f"v_add_u32 v{16 + jj}, v7, v8")
            a("v_mul_u32_u24 v8, 0x3000, v4")
            a(f"v_add_u32 v{19 + jj}, v7, v8")
    a("s_mul_i32 s41, s2, 393216")
    a("s_mul_i32 s42, s39, 384")
    a("s_mov_b32 s43, 0")
    a("s_mov_b32 s44, 0")
    a.label("L1_ld_loop")
    a("s_cmp_lt_u32 s43, 2")
    a("s_cbranch_scc1 L1_ld_nowait")
    a(f"s_cmp_eq_u32 s43, {NST + 1}")
    a("s_cbranch_scc1 L1_ld_w0")
    a("s_waitcnt vmcnt(24)")
    a("s_branch L1_ld_bar")
    a.label("L1_ld_w0")
    a("s_waitcnt vmcnt(0)")
    a.label("L1_ld_bar")
    a("s_barrier")
    a.label("L1_ld_nowait")
    a(f"s_cmp_ge_u32 s43, {NST}")
    a("s_cbranch_scc1 L1_ld_next")
    a("s_mov_b32 m0, s44")
    a(f"s_cmp_ge_u32 s43, {NW}")
    a("s_cbranch_scc1 L1_ld_kv")
    a("s_mul_i32 s46, s43, 786432")
    a("s_add_u32 s46, s46, s42")
    for g in range(8):
        for jj in range(3):
            a(f"buffer_load_dwordx4 v{19 + jj}, s[20:23], s46 offen lds")
            a("s_add_u32 m0, m0, 0x400")
            if jj == 2:
                a("s_add_u32 s46, s46, 98304")
            else:
                a("s_nop 0")
    a("s_branch L1_ld_adv")
    a.label("L1_ld_kv")
    a(f"s_sub_u32 s46, s43, {NW}")
    a("s_mul_i32 s46, s46, 12288")
    a("s_add_u32 s46, s46, s41")
    a("s_mov_b32 s45, s46")
    for half in range(2):
        for jj in range(6):
            a(f"buffer_load_dwordx4 v{10 + jj}, s[12:15], s46 offen lds")
            a("s_add_u32 m0, m0, 0x400")
            if jj == 5:
                a("s_add_u32 s46, s46, 6144")
            else:
                a("s_nop 0")
    for g in range(4):
        for jj in range(3):
            a(f"buffer_load_dwordx4 v{16 + jj}, s[16:19], s45 offen lds")
            a("s_add_u32 m0, m0, 0x400")
            if jj == 2:
                a("s_add_u32 s45, s45, 3072")
            else:
                a("s_nop 0")
    a.label("L1_ld_adv")
    a(f"s_add_u32 s44, s44, {SLOT}")
    a(f"s_cmp_eq_u32 s44, {SLOT * NSLOT}")
    a("s_cselect_b32 s44, 0, s44")
    a.label("L1_ld_next")
    a("s_add_u32 s43, s43, 1")
    a(f"s_cmp_lt_u32 s43, {NST + 2}")
    a("s_cbranch_scc1 L1_ld_loop")
    a("s_endpgm")

    QF = 16
    OA = 64
    SA = 160
    PF = 176
    AF = 184
    aWE, aWO, aVE, aVO = 10, 11, 12, 13
    aK = 232
    cE, cO = 236, 237
    cK = 238
    vM, vL, vAl, vMC, vT0, vT1, vPS, vXO, vOO = 242, 243, 244, 246, 247, 248, 249, 250, 251
    a.label("L1_compute")
    a("v_and_b32 v3, 15, v2")
    a("v_lshrrev_b32 v4, 5, v2")
    a("v_and_b32 v5, 31, v2")
    a("v_lshrrev_b32 v6, 4, v2")
    a("v_and_b32 v6, 1, v6")
    a("v_lshrrev_b32 v7, 2, v3")
    a("v_and_b32 v8, 3, v3")
    a("v_lshlrev_b32 v8, 3, v8")
    a("v_lshl_add_u32 v8, v6, 5, v8")
    a("v_lshrrev_b32 v9, 3, v3")
    a("v_lshlrev_b32 v9, 6, v9")
    a("v_lshl_add_u32 v14, v4, 3, v7")
    a("v_mul_u32_u24 v14, 0x180, v14")
    a("v_add_u32 v14, v14, v8")
    a(f"v_add_u32 v{aWE}, v14, v9")
    a(f"v_xor_b32 v15, 64, v9")
    a(f"v_add_u32 v{aWO}, v14, v15")
    a("v_lshl_add_u32 v14, v4, 2, v7")
    a("v_mul_u32_u24 v14, 0x180, v14")
    a("v_add_u32 v14, v14, v8")
    a(f"v_add_u32 v{aVE}, v14, v9")
    a(f"v_add_u32 v{aVO}, v14, v15")
    a("v_lshrrev_b32 v14, 1, v5")
    a("v_and_b32 v14, 7, v14")
    a("v_mul_u32_u24 v15, 0x180, v5")
    for q4 in range(4):
        a(f"v_add_u32 v9, {2 * q4}, v4")
        a("v_xor_b32 v9, v9, v14")
        a(f"v_lshl_add_u32 v{aK + q4}, v9, 4, v15")
    a("s_mul_i32 s45, s38, 96")
    a("s_lshl_b32 s46, s40, 5")
    a("s_add_u32 s45, s45, s46")
    a("v_add_u32 v14, s45, v5")
    a("v_lshlrev_b32 v15, 4, v4")
    a(f"v_mul_u32_u24 v{vXO}, 0x500, v14")
    a(f"v_add_u32 v{vXO}, v{vXO}, v15")
    a(f"v_mul_u32_u24 v{vOO}, 0x3000, v14")
    a(f"v_add_u32 v{vOO}, v{vOO}, v15")
    a("s_mul_i32 s46, s39, 384")
    a(f"v_add_u32 v{vOO}, s46, v{vOO}")
    a(f"v_mov_b32 v{vM}, 0xff800000")
    a(f"v_mov_b32 v{vL}, 0")
    cval = (192 ** -0.5) * math.log2(math.e)
    a(f"s_mov_b32 s49, 0x{f32bits(cval):08x}")

    XB = [16, 32]

    def xloads(i):
        for s in range(4):
            a(f"buffer_load_dwordx4 {vr(XB[i & 1] + 4 * s, 4)}, v{vXO}, s[8:11], 0 offen offset:{(64 * i + 16 * s) * 2}")

    xloads(0)
    for i in range(NW):
        slot = (i % NSLOT) * SLOT
        a("s_barrier")
        a(f"v_add_u32 v{cE}, {slot}, v{aWE}")
        a(f"v_add_u32 v{cO}, {slot}, v{aWO}")
        if i + 1 < NW:
            xloads(i + 1)
            a("s_waitcnt vmcnt(4)")
        else:
            a("s_waitcnt vmcnt(0)")
        items = []
        f = 0
        for s in range(4):
            for t in range(6):
                fr = AF + 4 * (f % 12)
                areg = cE if t % 2 == 0 else cO
                reads = []
                for half in range(2):
                    off = (16 * s + 4 * half) * 384 + 128 * (t >> 1)
                    reads.append(f"ds_read_b64_tr_b16 {vr(fr + 2 * half, 2)}, v{areg} offset:{off}")
                acc = vr(OA + 16 * t, 16)
                c = "0" if (i == 0 and s == 0) else acc
                m = f"v_mfma_f32_32x32x16_bf16 {acc}, {vr(fr, 4)}, {vr(XB[i & 1] + 4 * s, 4)}, {c}"
                items.append((reads, m))
                f += 1
        rolling(a, items, 6)
    a("s_nop 15")
    for t in range(6):
        for g2 in range(2):
            fq = QF + 4 * (2 * t + g2)
            src = OA + 16 * t + 8 * g2
            for k in range(4):
                a(f"v_cvt_pk_bf16_f32 v{fq + k}, v{src + 2 * k}, v{src + 2 * k + 1}")
    a("s_nop 1")
    for ks in range(12):
        fq = QF + 4 * ks
        a(f"v_permlane32_swap_b32 v{fq}, v{fq + 2}")
        a(f"v_permlane32_swap_b32 v{fq + 1}, v{fq + 3}")
    for r in range(96):
        a(f"v_mov_b32 v{OA + r}, 0")
    a(f"s_mov_b32 s47, {(NW % NSLOT) * SLOT}")
    a("s_mov_b32 s48, 0")

    a.label("L1_kv_loop")
    a("s_barrier")
    for q4 in range(4):
        a(f"v_add_u32 v{cK + q4}, s47, v{aK + q4}")
    a(f"v_add_u32 v{cE}, s47, v{aVE}")
    a(f"v_add_u32 v{cO}, s47, v{aVO}")
    for s in range(12):
        a(f"ds_read_b128 {vr(AF + 4 * s, 4)}, v{cK + (s & 3)} offset:{128 * (s >> 2)}")
    sacc = vr(SA, 16)
    for s in range(12):
        a(f"s_waitcnt lgkmcnt({11 - s})")
        c = "0" if s == 0 else sacc
        a(f"v_mfma_f32_32x32x16_bf16 {sacc}, {vr(AF + 4 * s, 4)}, {vr(QF + 4 * s, 4)}, {c}")
    vitems = []
    for f in range(12):
        s, t = f // 6, f % 6
        fr = AF + 4 * f
        areg = cE if t % 2 == 0 else cO
        reads = []
        for half in range(2):
            off = 12288 + (16 * s + 8 * half) * 384 + 128 * (t >> 1)
            reads.append(f"ds_read_b64_tr_b16 {vr(fr + 2 * half, 2)}, v{areg} offset:{off}")
        acc = vr(OA + 16 * t, 16)
        m = f"v_mfma_f32_32x32x16_bf16 {acc}, {vr(fr, 4)}, {vr(PF + 4 * s, 4)}, {acc}"
        vitems.append((reads, m))
    for f in range(6):
        for r in vitems[f][0]:
            a(r)
    a("s_nop 3")
    a(f"v_max3_f32 v{vT0}, v{SA}, v{SA + 1}, v{SA + 2}")
    a(f"v_max3_f32 v{vT1}, v{SA + 3}, v{SA + 4}, v{SA + 5}")
    a(f"v_max3_f32 v{vT0}, v{vT0}, v{SA + 6}, v{SA + 7}")
    a(f"v_max3_f32 v{vT1}, v{vT1}, v{SA + 8}, v{SA + 9}")
    a(f"v_max3_f32 v{vT0}, v{vT0}, v{SA + 10}, v{SA + 11}")
    a(f"v_max3_f32 v{vT1}, v{vT1}, v{SA + 12}, v{SA + 13}")
    a(f"v_max3_f32 v{vT0}, v{vT0}, v{SA + 14}, v{SA + 15}")
    a(f"v_max3_f32 v{vT0}, v{vT0}, v{vT1}, v{vM}")
    a(f"v_mov_b32 v{vT1}, v{vT0}")
    a("s_nop 1")
    a(f"v_permlane32_swap_b32 v{vT0}, v{vT1}")
    a("s_nop 1")
    a(f"v_max_f32 v{vT0}, v{vT0}, v{vT1}")
    a(f"v_sub_f32 v{vT1}, v{vM}, v{vT0}")
    a(f"v_mul_f32 v{vT1}, s49, v{vT1}")
    a(f"v_exp_f32 v{vAl}, v{vT1}")
    a(f"v_mov_b32 v{vM}, v{vT0}")
    a(f"v_mul_f32 v{vMC}, s49, v{vT0}")
    a(f"v_mov_b32 v{vAl + 1}, v{vAl}")
    for r in range(16):
        a(f"v_fma_f32 v{SA + r}, v{SA + r}, s49, -v{vMC}")
    for r in range(16):
        a(f"v_exp_f32 v{SA + r}, v{SA + r}")
    for r in range(48):
        a(f"v_pk_mul_f32 {vr(OA + 2 * r, 2)}, {vr(OA + 2 * r, 2)}, {vr(vAl, 2)}")
    a(f"v_add_f32 v{vPS}, v{SA}, v{SA + 1}")
    a(f"v_add_f32 v{vT0}, v{SA + 2}, v{SA + 3}")
    for r in range(4, 16, 2):
        a(f"v_add_f32 v{vPS}, v{vPS}, v{SA + r}")
        a(f"v_add_f32 v{vT0}, v{vT0}, v{SA + r + 1}")
    a(f"v_add_f32 v{vPS}, v{vPS}, v{vT0}")
    a(f"v_fma_f32 v{vL}, v{vL}, v{vAl}, v{vPS}")
    for k in range(8):
        a(f"v_cvt_pk_bf16_f32 v{PF + k}, v{SA + 2 * k}, v{SA + 2 * k + 1}")
    a("s_nop 1")
    for f in range(12):
        if f + 6 < 12:
            for r in vitems[f + 6][0]:
                a(r)
        last = min(f + 6, 11)
        a(f"s_waitcnt lgkmcnt({2 * (last - f)})")
        a(vitems[f][1])
    a(f"s_add_u32 s47, s47, {SLOT}")
    a(f"s_cmp_eq_u32 s47, {SLOT * NSLOT}")
    a("s_cselect_b32 s47, 0, s47")
    a("s_add_u32 s48, s48, 1")
    a(f"s_cmp_lt_u32 s48, {NKV}")
    a("s_cbranch_scc1 L1_kv_loop")

    a(f"v_mov_b32 v{vT1}, v{vL}")
    a("s_nop 1")
    a(f"v_permlane32_swap_b32 v{vL}, v{vT1}")
    a("s_nop 1")
    a(f"v_add_f32 v{vL}, v{vL}, v{vT1}")
    a(f"v_rcp_f32 v{vAl}, v{vL}")
    a("s_nop 7")
    a(f"v_mov_b32 v{vAl + 1}, v{vAl}")
    for r in range(48):
        a(f"v_pk_mul_f32 {vr(OA + 2 * r, 2)}, {vr(OA + 2 * r, 2)}, {vr(vAl, 2)}")
    for t in range(6):
        for g2 in range(2):
            fq = QF + 4 * (2 * t + g2)
            src = OA + 16 * t + 8 * g2
            for k in range(4):
                a(f"v_cvt_pk_bf16_f32 v{fq + k}, v{src + 2 * k}, v{src + 2 * k + 1}")
    a("s_nop 1")
    for ks in range(12):
        fq = QF + 4 * ks
        a(f"v_permlane32_swap_b32 v{fq}, v{fq + 2}")
        a(f"v_permlane32_swap_b32 v{fq + 1}, v{fq + 3}")
    a("s_nop 1")
    for ks in range(12):
        fq = QF + 4 * ks
        a(f"buffer_store_dwordx4 {vr(fq, 4)}, v{vOO}, s[24:27], 0 offen offset:{32 * ks}")
    a.label("L1_end")
    a("s_endpgm")


K2 = "oproj_kernel"
S2 = 16384
NS2 = 4
NST2 = 24
PART_OFF = 18874368
PART_SLICE = 3932160


def gen_oproj(a):
    a.raw(f".globl {K2}")
    a.raw(".p2align 8")
    a.raw(f".type {K2},@function")
    a.label(K2)
    a("s_cmp_ge_u32 s2, 240")
    a("s_cbranch_scc1 L2_end")
    a("s_load_dwordx2 s[28:29], s[0:1], 32")
    a("s_load_dwordx2 s[30:31], s[0:1], 56")
    a("v_lshrrev_b32 v1, 6, v0")
    a("v_and_b32 v2, 63, v0")
    a("v_readfirstlane_b32 s40, v1")
    a("s_and_b32 s38, s2, 3")
    a("s_lshr_b32 s39, s2, 2")
    a("s_mul_i32 s41, s39, 0xcccd")
    a("s_lshr_b32 s41, s41, 18")
    a("s_mul_i32 s42, s41, 5")
    a("s_sub_u32 s42, s39, s42")
    a("s_waitcnt lgkmcnt(0)")
    srd(a, 28, 7864320, 8)
    srd(a, 30, 18874368, 12)
    a(f"s_add_u32 s32, s30, {PART_OFF}")
    a("s_addc_u32 s33, s31, 0")
    srd(a, 32, 4 * PART_SLICE, 16)
    a("s_cmp_eq_u32 s40, 4")
    a("s_cbranch_scc0 L2_compute")
    a("v_lshrrev_b32 v3, 4, v2")
    a("v_and_b32 v4, 15, v2")
    a("v_lshlrev_b32 v5, 2, v3")
    a("v_xor_b32 v4, v4, v5")
    a("v_lshlrev_b32 v4, 4, v4")
    a("v_mul_u32_u24 v5, 0x500, v3")
    a("v_add_u32 v10, v4, v5")
    a("s_mul_i32 s45, s38, 1966080")
    a("s_lshl_b32 s46, s42, 8")
    a("s_add_u32 s45, s45, s46")
    a("s_mov_b32 s43, 0")
    a("s_mov_b32 s44, 0")
    a.label("L2_ld_loop")
    a("s_cmp_lt_u32 s43, 3")
    a("s_cbranch_scc1 L2_ld_nowait")
    a(f"s_cmp_eq_u32 s43, {NST2 + 1}")
    a("s_cbranch_scc1 L2_ld_w16")
    a(f"s_cmp_eq_u32 s43, {NST2 + 2}")
    a("s_cbranch_scc1 L2_ld_w0")
    a("s_waitcnt vmcnt(32)")
    a("s_branch L2_ld_bar")
    a.label("L2_ld_w16")
    a("s_waitcnt vmcnt(16)")
    a("s_branch L2_ld_bar")
    a.label("L2_ld_w0")
    a("s_waitcnt vmcnt(0)")
    a.label("L2_ld_bar")
    a("s_barrier")
    a.label("L2_ld_nowait")
    a(f"s_cmp_ge_u32 s43, {NST2}")
    a("s_cbranch_scc1 L2_ld_next")
    a("s_mov_b32 m0, s44")
    a("s_nop 0")
    for jj in range(16):
        a("buffer_load_dwordx4 v10, s[8:11], s45 offen lds")
        a("s_add_u32 m0, m0, 0x400")
        a("s_add_u32 s45, s45, 5120")
    a(f"s_add_u32 s44, s44, {S2}")
    a(f"s_cmp_eq_u32 s44, {S2 * NS2}")
    a("s_cselect_b32 s44, 0, s44")
    a.label("L2_ld_next")
    a("s_add_u32 s43, s43, 1")
    a(f"s_cmp_lt_u32 s43, {NST2 + 3}")
    a("s_cbranch_scc1 L2_ld_loop")
    a("s_endpgm")
    OB = [16, 32, 48]
    AC = 64
    AF = 128
    aW = 10
    vXO, vPO = 14, 15
    a.label("L2_compute")
    a("v_and_b32 v3, 15, v2")
    a("v_lshrrev_b32 v4, 5, v2")
    a("v_and_b32 v5, 31, v2")
    a("v_lshrrev_b32 v6, 4, v2")
    a("v_and_b32 v6, 1, v6")
    a("v_lshrrev_b32 v7, 2, v3")
    a("v_and_b32 v8, 3, v3")
    a("v_lshlrev_b32 v8, 3, v8")
    a("v_lshl_add_u32 v8, v6, 5, v8")
    a("v_lshl_add_u32 v9, v4, 3, v7")
    a("v_lshl_add_u32 v8, v9, 8, v8")
    for t in range(4):
        a(f"v_xor_b32 v9, {t}, v7")
        a(f"v_lshl_add_u32 v{aW + t}, v9, 6, v8")
    a("s_lshl_b32 s45, s41, 7")
    a("s_lshl_b32 s46, s40, 5")
    a("s_add_u32 s45, s45, s46")
    a("v_add_u32 v9, s45, v5")
    a(f"v_mul_u32_u24 v{vXO}, 0x3000, v9")
    a(f"v_lshl_add_u32 v{vXO}, v4, 4, v{vXO}")
    a("s_mul_i32 s46, s38, 3072")
    a(f"v_add_u32 v{vXO}, s46, v{vXO}")
    a(f"v_mul_u32_u24 v{vPO}, 0xa00, v9")
    a(f"v_lshl_add_u32 v{vPO}, v4, 4, v{vPO}")
    a(f"s_mul_i32 s46, s38, {PART_SLICE}")
    a("s_lshl_b32 s47, s42, 9")
    a("s_add_u32 s46, s46, s47")
    a(f"v_add_u32 v{vPO}, s46, v{vPO}")

    def oloads(i):
        for s in range(4):
            a(f"buffer_load_dwordx4 {vr(OB[i % 3] + 4 * s, 4)}, v{vXO}, s[12:15], 0 offen offset:{128 * i + 32 * s}")

    oloads(0)
    oloads(1)
    fcount = 0
    for i in range(NST2):
        slot = (i % NS2) * S2
        a("s_barrier")
        if i + 2 < NST2:
            oloads(i + 2)
            a("s_waitcnt vmcnt(8)")
        elif i + 1 < NST2:
            a("s_waitcnt vmcnt(4)")
        else:
            a("s_waitcnt vmcnt(0)")
        items = []
        for s in range(4):
            for t in range(4):
                fr = AF + 4 * (fcount % 12)
                fcount += 1
                reads = []
                for half in range(2):
                    off = slot + (16 * s + 4 * half) * 256
                    reads.append(f"ds_read_b64_tr_b16 {vr(fr + 2 * half, 2)}, v{aW + t} offset:{off}")
                acc = vr(AC + 16 * t, 16)
                c = "0" if (i == 0 and s == 0) else acc
                m = f"v_mfma_f32_32x32x16_bf16 {acc}, {vr(fr, 4)}, {vr(OB[i % 3] + 4 * s, 4)}, {c}"
                items.append((reads, m))
        rolling(a, items, 6)
    a("s_nop 15")
    for t in range(4):
        for q in range(4):
            a(f"buffer_store_dwordx4 {vr(AC + 16 * t + 4 * q, 4)}, v{vPO}, s[16:19], 0 offen offset:{128 * t + 32 * q}")
    a.label("L2_end")
    a("s_endpgm")


K3 = "reduce_kernel"


def gen_reduce(a):
    a.raw(f".globl {K3}")
    a.raw(".p2align 8")
    a.raw(f".type {K3},@function")
    a.label(K3)
    a("s_cmp_ge_u32 s2, 480")
    a("s_cbranch_scc1 L3_end")
    a("s_load_dwordx2 s[28:29], s[0:1], 40")
    a("s_load_dwordx2 s[30:31], s[0:1], 56")
    a("s_lshl_b32 s3, s2, 8")
    a("v_add_u32 v1, s3, v0")
    a("v_lshlrev_b32 v2, 5, v1")
    a("v_lshlrev_b32 v3, 4, v1")
    a("s_waitcnt lgkmcnt(0)")
    srd(a, 28, 1966080, 8)
    a(f"s_add_u32 s32, s30, {PART_OFF}")
    a("s_addc_u32 s33, s31, 0")
    srd(a, 32, 4 * PART_SLICE, 12)
    for k in range(4):
        a(f"s_mov_b32 s{36 + k}, {k * PART_SLICE}")
    for k in range(4):
        a(f"buffer_load_dwordx4 {vr(8 + 8 * k, 4)}, v2, s[12:15], s{36 + k} offen")
        a(f"buffer_load_dwordx4 {vr(12 + 8 * k, 4)}, v2, s[12:15], s{36 + k} offen offset:16")
    a("s_waitcnt vmcnt(4)")
    for e in range(8):
        a(f"v_add_f32 v{8 + e}, v{8 + e}, v{16 + e}")
    a("s_waitcnt vmcnt(0)")
    for e in range(8):
        a(f"v_add_f32 v{24 + e}, v{24 + e}, v{32 + e}")
    for e in range(8):
        a(f"v_add_f32 v{8 + e}, v{8 + e}, v{24 + e}")
    for e in range(4):
        a(f"v_cvt_pk_bf16_f32 v{4 + e}, v{8 + 2 * e}, v{9 + 2 * e}")
    a("buffer_store_dwordx4 v[4:7], v3, s[8:11], 0 offen")
    a.label("L3_end")
    a("s_endpgm")


def kd(name, vgpr, sgpr=102):
    acc = (vgpr + 3) // 4 * 4
    return f""".p2align 6
.amdhsa_kernel {name}
  .amdhsa_next_free_vgpr {vgpr}
  .amdhsa_next_free_sgpr {sgpr}
  .amdhsa_accum_offset {acc}
  .amdhsa_group_segment_fixed_size 0
  .amdhsa_kernarg_size 64
  .amdhsa_user_sgpr_count 2
  .amdhsa_user_sgpr_kernarg_segment_ptr 1
  .amdhsa_system_sgpr_workgroup_id_x 1
.end_amdhsa_kernel
"""


def main():
    a = Asm()
    out = HEADER
    out += f"; @launch kernel={MAIN} grid=(512,1,1) block=(256,1,1) lds={SLOT * NSLOT}\n"
    out += f"; @launch kernel={K2} grid=(240,1,1) block=(320,1,1) lds={S2 * NS2}\n"
    out += f"; @launch kernel={K3} grid=(480,1,1) block=(256,1,1) lds=0\n"
    out += '.amdgcn_target "amdgcn-amd-amdhsa--gfx950"\n.text\n'
    gen_attn(a)
    gen_oproj(a)
    gen_reduce(a)
    out += a.text()
    out += '.section .rodata,"a"\n'
    out += kd(MAIN, 256)
    out += kd(K2, 176)
    out += kd(K3, 40)
    open(OUT, "w").write(out)
    print("wrote", OUT, len(out), "bytes")


if __name__ == "__main__":
    main()
```

```python
import math
import struct
import sys
import os
NOCOMP=int(os.environ.get("NOCOMP","0"))
NOLOAD=int(os.environ.get("NOLOAD","0"))
KVPOL=os.environ.get("KVPOL","")

OUT = os.environ.get("OUT", "standalone__mha_block_cached__near_ridge.s")

HEADER = open("standalone__mha_block_cached__near_ridge.s.ref").read().split("; Override launch geometry")[0]

MAIN = "standalone__mha_block_cached__near_ridge_kernel"


def f32bits(x):
    return struct.unpack("<I", struct.pack("<f", x))[0]


class Asm:
    def __init__(self):
        self.lines = []

    def __call__(self, s):
        self.lines.append("    " + s)

    def label(self, l):
        self.lines.append(l + ":")

    def raw(self, s):
        self.lines.append(s)

    def text(self):
        return "\n".join(self.lines) + "\n"


def vr(a, n):
    return f"v[{a}:{a + n - 1}]"


def srd(a, base, nbytes, sreg):
    a(f"s_mov_b32 s{sreg}, s{base}")
    a(f"s_and_b32 s{sreg + 1}, s{base + 1}, 0xffff")
    a(f"s_mov_b32 s{sreg + 2}, {nbytes}")
    a(f"s_mov_b32 s{sreg + 3}, 0x00020000")


def rolling(a, items, window, nslots_reads=None):
    n = len(items)
    nr = [len(it[0]) for it in items]
    for f in range(min(window, n)):
        for r in items[f][0]:
            a(r)
    for f in range(n):
        if f + window < n:
            for r in items[f + window][0]:
                a(r)
        last = min(f + window, n - 1)
        outstanding = sum(nr[f + 1:last + 1])
        assert outstanding <= 15
        a(f"s_waitcnt lgkmcnt({outstanding})")
        a(items[f][1])


SLOT = 24576
NSLOT = 3
NW = 10
NKV = 32
NST = NW + NKV


def gen_attn(a):
    a.raw(f".globl {MAIN}")
    a.raw(".p2align 8")
    a.raw(f".type {MAIN},@function")
    a.label(MAIN)
    a("s_cmp_ge_u32 s2, 512")
    a("s_cbranch_scc1 L1_end")
    a("s_load_dwordx8 s[28:35], s[0:1], 0")
    a("s_load_dwordx2 s[36:37], s[0:1], 56")
    a("v_lshrrev_b32 v1, 6, v0")
    a("v_and_b32 v2, 63, v0")
    a("v_readfirstlane_b32 s40, v1")
    a("s_lshr_b32 s38, s2, 5")
    a("s_and_b32 s39, s2, 31")
    a("s_waitcnt lgkmcnt(0)")
    srd(a, 28, 1966080, 8)
    srd(a, 30, 201326592, 12)
    srd(a, 32, 201326592, 16)
    srd(a, 34, 7864320, 20)
    srd(a, 36, 18874368, 24)
    a("s_cmp_eq_u32 s40, 3")
    a("s_cbranch_scc0 L1_compute")

    for jj in range(6):
        a(f"v_add_u32 v3, {64 * jj}, v2")
        a("v_mul_u32_u24 v4, 0xaab, v3")
        a("v_lshrrev_b32 v4, 16, v4")
        a("v_mul_u32_u24 v5, 24, v4")
        a("v_sub_u32 v5, v3, v5")
        a("v_lshrrev_b32 v6, 1, v4")
        a("v_and_b32 v7, 7, v6")
        a("v_xor_b32 v7, v7, v5")
        a("v_lshlrev_b32 v7, 4, v7")
        a("v_mul_u32_u24 v8, 0x180, v4")
        a(f"v_add_u32 v{10 + jj}, v7, v8")
        if jj < 3:
            a("v_and_b32 v7, 1, v6")
            a("v_lshlrev_b32 v7, 2, v7")
            a("v_xor_b32 v7, v7, v5")
            a("v_lshlrev_b32 v7, 4, v7")
            a(f"v_add_u32 v{16 + jj}, v7, v8")
            a("v_mul_u32_u24 v8, 0x3000, v4")
            a(f"v_add_u32 v{19 + jj}, v7, v8")
    a("s_mul_i32 s41, s2, 393216")
    a("s_mul_i32 s42, s39, 384")
    a("s_mov_b32 s43, 0")
    a("s_mov_b32 s44, 0")
    a.label("L1_ld_loop")
    a("s_cmp_lt_u32 s43, 2")
    a("s_cbranch_scc1 L1_ld_nowait")
    a(f"s_cmp_eq_u32 s43, {NST + 1}")
    a("s_cbranch_scc1 L1_ld_w0")
    a("s_waitcnt vmcnt(24)")
    a("s_branch L1_ld_bar")
    a.label("L1_ld_w0")
    a("s_waitcnt vmcnt(0)")
    a.label("L1_ld_bar")
    a("s_barrier")
    a.label("L1_ld_nowait")
    a(f"s_cmp_ge_u32 s43, {NST}")
    a("s_cbranch_scc1 L1_ld_next")
    if NOLOAD:
        a("s_branch L1_ld_next")
    a("s_mov_b32 m0, s44")
    a(f"s_cmp_ge_u32 s43, {NW}")
    a("s_cbranch_scc1 L1_ld_kv")
    a("s_mul_i32 s46, s43, 786432")
    a("s_add_u32 s46, s46, s42")
    for g in range(8):
        for jj in range(3):
            a(f"buffer_load_dwordx4 v{19 + jj}, s[20:23], s46 offen lds")
            a("s_add_u32 m0, m0, 0x400")
            if jj == 2:
                a("s_add_u32 s46, s46, 98304")
            else:
                a("s_nop 0")
    a("s_branch L1_ld_adv")
    a.label("L1_ld_kv")
    a(f"s_sub_u32 s46, s43, {NW}")
    a("s_mul_i32 s46, s46, 12288")
    a("s_add_u32 s46, s46, s41")
    a("s_mov_b32 s45, s46")
    for half in range(2):
        for jj in range(6):
            a(f"buffer_load_dwordx4 v{10 + jj}, s[12:15], s46 offen {KVPOL} lds")
            a("s_add_u32 m0, m0, 0x400")
            if jj == 5:
                a("s_add_u32 s46, s46, 6144")
            else:
                a("s_nop 0")
    for g in range(4):
        for jj in range(3):
            a(f"buffer_load_dwordx4 v{16 + jj}, s[16:19], s45 offen {KVPOL} lds")
            a("s_add_u32 m0, m0, 0x400")
            if jj == 2:
                a("s_add_u32 s45, s45, 3072")
            else:
                a("s_nop 0")
    a.label("L1_ld_adv")
    a(f"s_add_u32 s44, s44, {SLOT}")
    a(f"s_cmp_eq_u32 s44, {SLOT * NSLOT}")
    a("s_cselect_b32 s44, 0, s44")
    a.label("L1_ld_next")
    a("s_add_u32 s43, s43, 1")
    a(f"s_cmp_lt_u32 s43, {NST + 2}")
    a("s_cbranch_scc1 L1_ld_loop")
    a("s_endpgm")

    QF = 16
    OA = 64
    SA = 160
    PF = 176
    AF = 184
    aWE, aWO, aVE, aVO = 10, 11, 12, 13
    aK = 232
    cE, cO = 236, 237
    cK = 238
    vM, vL, vAl, vMC, vT0, vT1, vPS, vXO, vOO = 242, 243, 244, 246, 247, 248, 249, 250, 251
    a.label("L1_compute")
    if NOCOMP:
        for i in range(NST):
            a("s_barrier")
        a("s_endpgm")
    a("v_and_b32 v3, 15, v2")
    a("v_lshrrev_b32 v4, 5, v2")
    a("v_and_b32 v5, 31, v2")
    a("v_lshrrev_b32 v6, 4, v2")
    a("v_and_b32 v6, 1, v6")
    a("v_lshrrev_b32 v7, 2, v3")
    a("v_and_b32 v8, 3, v3")
    a("v_lshlrev_b32 v8, 3, v8")
    a("v_lshl_add_u32 v8, v6, 5, v8")
    a("v_lshrrev_b32 v9, 3, v3")
    a("v_lshlrev_b32 v9, 6, v9")
    a("v_lshl_add_u32 v14, v4, 3, v7")
    a("v_mul_u32_u24 v14, 0x180, v14")
    a("v_add_u32 v14, v14, v8")
    a(f"v_add_u32 v{aWE}, v14, v9")
    a(f"v_xor_b32 v15, 64, v9")
    a(f"v_add_u32 v{aWO}, v14, v15")
    a("v_lshl_add_u32 v14, v4, 2, v7")
    a("v_mul_u32_u24 v14, 0x180, v14")
    a("v_add_u32 v14, v14, v8")
    a(f"v_add_u32 v{aVE}, v14, v9")
    a(f"v_add_u32 v{aVO}, v14, v15")
    a("v_lshrrev_b32 v14, 1, v5")
    a("v_and_b32 v14, 7, v14")
    a("v_mul_u32_u24 v15, 0x180, v5")
    for q4 in range(4):
        a(f"v_add_u32 v9, {2 * q4}, v4")
        a("v_xor_b32 v9, v9, v14")
        a(f"v_lshl_add_u32 v{aK + q4}, v9, 4, v15")
    a("s_mul_i32 s45, s38, 96")
    a("s_lshl_b32 s46, s40, 5")
    a("s_add_u32 s45, s45, s46")
    a("v_add_u32 v14, s45, v5")
    a("v_lshlrev_b32 v15, 4, v4")
    a(f"v_mul_u32_u24 v{vXO}, 0x500, v14")
    a(f"v_add_u32 v{vXO}, v{vXO}, v15")
    a(f"v_mul_u32_u24 v{vOO}, 0x3000, v14")
    a(f"v_add_u32 v{vOO}, v{vOO}, v15")
    a("s_mul_i32 s46, s39, 384")
    a(f"v_add_u32 v{vOO}, s46, v{vOO}")
    a(f"v_mov_b32 v{vM}, 0xff800000")
    a(f"v_mov_b32 v{vL}, 0")
    cval = (192 ** -0.5) * math.log2(math.e)
    a(f"s_mov_b32 s49, 0x{f32bits(cval):08x}")

    XB = [16, 32]

    def xloads(i):
        for s in range(4):
            a(f"buffer_load_dwordx4 {vr(XB[i & 1] + 4 * s, 4)}, v{vXO}, s[8:11], 0 offen offset:{(64 * i + 16 * s) * 2}")

    xloads(0)
    for i in range(NW):
        slot = (i % NSLOT) * SLOT
        a("s_barrier")
        a(f"v_add_u32 v{cE}, {slot}, v{aWE}")
        a(f"v_add_u32 v{cO}, {slot}, v{aWO}")
        if i + 1 < NW:
            xloads(i + 1)
            a("s_waitcnt vmcnt(4)")
        else:
            a("s_waitcnt vmcnt(0)")
        items = []
        f = 0
        for s in range(4):
            for t in range(6):
                fr = AF + 4 * (f % 12)
                areg = cE if t % 2 == 0 else cO
                reads = []
                for half in range(2):
                    off = (16 * s + 4 * half) * 384 + 128 * (t >> 1)
                    reads.append(f"ds_read_b64_tr_b16 {vr(fr + 2 * half, 2)}, v{areg} offset:{off}")
                acc = vr(OA + 16 * t, 16)
                c = "0" if (i == 0 and s == 0) else acc
                m = f"v_mfma_f32_32x32x16_bf16 {acc}, {vr(fr, 4)}, {vr(XB[i & 1] + 4 * s, 4)}, {c}"
                items.append((reads, m))
                f += 1
        rolling(a, items, 6)
    a("s_nop 15")
    for t in range(6):
        for g2 in range(2):
            fq = QF + 4 * (2 * t + g2)
            src = OA + 16 * t + 8 * g2
            for k in range(4):
                a(f"v_cvt_pk_bf16_f32 v{fq + k}, v{src + 2 * k}, v{src + 2 * k + 1}")
    a("s_nop 1")
    for ks in range(12):
        fq = QF + 4 * ks
        a(f"v_permlane32_swap_b32 v{fq}, v{fq + 2}")
        a(f"v_permlane32_swap_b32 v{fq + 1}, v{fq + 3}")
    for r in range(96):
        a(f"v_mov_b32 v{OA + r}, 0")
    a(f"s_mov_b32 s47, {(NW % NSLOT) * SLOT}")
    a("s_mov_b32 s48, 0")

    a.label("L1_kv_loop")
    a("s_barrier")
    for q4 in range(4):
        a(f"v_add_u32 v{cK + q4}, s47, v{aK + q4}")
    a(f"v_add_u32 v{cE}, s47, v{aVE}")
    a(f"v_add_u32 v{cO}, s47, v{aVO}")
    for s in range(12):
        a(f"ds_read_b128 {vr(AF + 4 * s, 4)}, v{cK + (s & 3)} offset:{128 * (s >> 2)}")
    sacc = vr(SA, 16)
    for s in range(12):
        a(f"s_waitcnt lgkmcnt({11 - s})")
        c = "0" if s == 0 else sacc
        a(f"v_mfma_f32_32x32x16_bf16 {sacc}, {vr(AF + 4 * s, 4)}, {vr(QF + 4 * s, 4)}, {c}")
    vitems = []
    for f in range(12):
        s, t = f // 6, f % 6
        fr = AF + 4 * f
        areg = cE if t % 2 == 0 else cO
        reads = []
        for half in range(2):
            off = 12288 + (16 * s + 8 * half) * 384 + 128 * (t >> 1)
            reads.append(f"ds_read_b64_tr_b16 {vr(fr + 2 * half, 2)}, v{areg} offset:{off}")
        acc = vr(OA + 16 * t, 16)
        m = f"v_mfma_f32_32x32x16_bf16 {acc}, {vr(fr, 4)}, {vr(PF + 4 * s, 4)}, {acc}"
        vitems.append((reads, m))
    for f in range(6):
        for r in vitems[f][0]:
            a(r)
    a("s_nop 3")
    a(f"v_max3_f32 v{vT0}, v{SA}, v{SA + 1}, v{SA + 2}")
    a(f"v_max3_f32 v{vT1}, v{SA + 3}, v{SA + 4}, v{SA + 5}")
    a(f"v_max3_f32 v{vT0}, v{vT0}, v{SA + 6}, v{SA + 7}")
    a(f"v_max3_f32 v{vT1}, v{vT1}, v{SA + 8}, v{SA + 9}")
    a(f"v_max3_f32 v{vT0}, v{vT0}, v{SA + 10}, v{SA + 11}")
    a(f"v_max3_f32 v{vT1}, v{vT1}, v{SA + 12}, v{SA + 13}")
    a(f"v_max3_f32 v{vT0}, v{vT0}, v{SA + 14}, v{SA + 15}")
    a(f"v_max3_f32 v{vT0}, v{vT0}, v{vT1}, v{vM}")
    a(f"v_mov_b32 v{vT1}, v{vT0}")
    a("s_nop 1")
    a(f"v_permlane32_swap_b32 v{vT0}, v{vT1}")
    a("s_nop 1")
    a(f"v_max_f32 v{vT0}, v{vT0}, v{vT1}")
    a(f"v_sub_f32 v{vT1}, v{vM}, v{vT0}")
    a(f"v_mul_f32 v{vT1}, s49, v{vT1}")
    a(f"v_exp_f32 v{vAl}, v{vT1}")
    a(f"v_mov_b32 v{vM}, v{vT0}")
    a(f"v_mul_f32 v{vMC}, s49, v{vT0}")
    a(f"v_mov_b32 v{vAl + 1}, v{vAl}")
    for r in range(16):
        a(f"v_fma_f32 v{SA + r}, v{SA + r}, s49, -v{vMC}")
    for r in range(16):
        a(f"v_exp_f32 v{SA + r}, v{SA + r}")
    for r in range(48):
        a(f"v_pk_mul_f32 {vr(OA + 2 * r, 2)}, {vr(OA + 2 * r, 2)}, {vr(vAl, 2)}")
    a(f"v_add_f32 v{vPS}, v{SA}, v{SA + 1}")
    a(f"v_add_f32 v{vT0}, v{SA + 2}, v{SA + 3}")
    for r in range(4, 16, 2):
        a(f"v_add_f32 v{vPS}, v{vPS}, v{SA + r}")
        a(f"v_add_f32 v{vT0}, v{vT0}, v{SA + r + 1}")
    a(f"v_add_f32 v{vPS}, v{vPS}, v{vT0}")
    a(f"v_fma_f32 v{vL}, v{vL}, v{vAl}, v{vPS}")
    for k in range(8):
        a(f"v_cvt_pk_bf16_f32 v{PF + k}, v{SA + 2 * k}, v{SA + 2 * k + 1}")
    a("s_nop 1")
    for f in range(12):
        if f + 6 < 12:
            for r in vitems[f + 6][0]:
                a(r)
        last = min(f + 6, 11)
        a(f"s_waitcnt lgkmcnt({2 * (last - f)})")
        a(vitems[f][1])
    a(f"s_add_u32 s47, s47, {SLOT}")
    a(f"s_cmp_eq_u32 s47, {SLOT * NSLOT}")
    a("s_cselect_b32 s47, 0, s47")
    a("s_add_u32 s48, s48, 1")
    a(f"s_cmp_lt_u32 s48, {NKV}")
    a("s_cbranch_scc1 L1_kv_loop")

    a(f"v_mov_b32 v{vT1}, v{vL}")
    a("s_nop 1")
    a(f"v_permlane32_swap_b32 v{vL}, v{vT1}")
    a("s_nop 1")
    a(f"v_add_f32 v{vL}, v{vL}, v{vT1}")
    a(f"v_rcp_f32 v{vAl}, v{vL}")
    a("s_nop 7")
    a(f"v_mov_b32 v{vAl + 1}, v{vAl}")
    for r in range(48):
        a(f"v_pk_mul_f32 {vr(OA + 2 * r, 2)}, {vr(OA + 2 * r, 2)}, {vr(vAl, 2)}")
    for t in range(6):
        for g2 in range(2):
            fq = QF + 4 * (2 * t + g2)
            src = OA + 16 * t + 8 * g2
            for k in range(4):
                a(f"v_cvt_pk_bf16_f32 v{fq + k}, v{src + 2 * k}, v{src + 2 * k + 1}")
    a("s_nop 1")
    for ks in range(12):
        fq = QF + 4 * ks
        a(f"v_permlane32_swap_b32 v{fq}, v{fq + 2}")
        a(f"v_permlane32_swap_b32 v{fq + 1}, v{fq + 3}")
    a("s_nop 1")
    for ks in range(12):
        fq = QF + 4 * ks
        a(f"buffer_store_dwordx4 {vr(fq, 4)}, v{vOO}, s[24:27], 0 offen offset:{32 * ks}")
    a.label("L1_end")
    a("s_endpgm")


K2 = "oproj_kernel"
S2 = 16384
NS2 = 4
NST2 = 24
PART_OFF = 18874368
PART_SLICE = 3932160


def gen_oproj(a):
    a.raw(f".globl {K2}")
    a.raw(".p2align 8")
    a.raw(f".type {K2},@function")
    a.label(K2)
    a("s_cmp_ge_u32 s2, 240")
    a("s_cbranch_scc1 L2_end")
    a("s_load_dwordx2 s[28:29], s[0:1], 32")
    a("s_load_dwordx2 s[30:31], s[0:1], 56")
    a("v_lshrrev_b32 v1, 6, v0")
    a("v_and_b32 v2, 63, v0")
    a("v_readfirstlane_b32 s40, v1")
    a("s_and_b32 s38, s2, 3")
    a("s_lshr_b32 s39, s2, 2")
    a("s_mul_i32 s41, s39, 0xcccd")
    a("s_lshr_b32 s41, s41, 18")
    a("s_mul_i32 s42, s41, 5")
    a("s_sub_u32 s42, s39, s42")
    a("s_waitcnt lgkmcnt(0)")
    srd(a, 28, 7864320, 8)
    srd(a, 30, 18874368, 12)
    a(f"s_add_u32 s32, s30, {PART_OFF}")
    a("s_addc_u32 s33, s31, 0")
    srd(a, 32, 4 * PART_SLICE, 16)
    a("s_cmp_eq_u32 s40, 4")
    a("s_cbranch_scc0 L2_compute")
    a("v_lshrrev_b32 v3, 4, v2")
    a("v_and_b32 v4, 15, v2")
    a("v_lshlrev_b32 v5, 2, v3")
    a("v_xor_b32 v4, v4, v5")
    a("v_lshlrev_b32 v4, 4, v4")
    a("v_mul_u32_u24 v5, 0x500, v3")
    a("v_add_u32 v10, v4, v5")
    a("s_mul_i32 s45, s38, 1966080")
    a("s_lshl_b32 s46, s42, 8")
    a("s_add_u32 s45, s45, s46")
    a("s_mov_b32 s43, 0")
    a("s_mov_b32 s44, 0")
    a.label("L2_ld_loop")
    a("s_cmp_lt_u32 s43, 3")
    a("s_cbranch_scc1 L2_ld_nowait")
    a(f"s_cmp_eq_u32 s43, {NST2 + 1}")
    a("s_cbranch_scc1 L2_ld_w16")
    a(f"s_cmp_eq_u32 s43, {NST2 + 2}")
    a("s_cbranch_scc1 L2_ld_w0")
    a("s_waitcnt vmcnt(32)")
    a("s_branch L2_ld_bar")
    a.label("L2_ld_w16")
    a("s_waitcnt vmcnt(16)")
    a("s_branch L2_ld_bar")
    a.label("L2_ld_w0")
    a("s_waitcnt vmcnt(0)")
    a.label("L2_ld_bar")
    a("s_barrier")
    a.label("L2_ld_nowait")
    a(f"s_cmp_ge_u32 s43, {NST2}")
    a("s_cbranch_scc1 L2_ld_next")
    a("s_mov_b32 m0, s44")
    a("s_nop 0")
    for jj in range(16):
        a("buffer_load_dwordx4 v10, s[8:11], s45 offen lds")
        a("s_add_u32 m0, m0, 0x400")
        a("s_add_u32 s45, s45, 5120")
    a(f"s_add_u32 s44, s44, {S2}")
    a(f"s_cmp_eq_u32 s44, {S2 * NS2}")
    a("s_cselect_b32 s44, 0, s44")
    a.label("L2_ld_next")
    a("s_add_u32 s43, s43, 1")
    a(f"s_cmp_lt_u32 s43, {NST2 + 3}")
    a("s_cbranch_scc1 L2_ld_loop")
    a("s_endpgm")
    OB = [16, 32, 48]
    AC = 64
    AF = 128
    aW = 10
    vXO, vPO = 14, 15
    a.label("L2_compute")
    a("v_and_b32 v3, 15, v2")
    a("v_lshrrev_b32 v4, 5, v2")
    a("v_and_b32 v5, 31, v2")
    a("v_lshrrev_b32 v6, 4, v2")
    a("v_and_b32 v6, 1, v6")
    a("v_lshrrev_b32 v7, 2, v3")
    a("v_and_b32 v8, 3, v3")
    a("v_lshlrev_b32 v8, 3, v8")
    a("v_lshl_add_u32 v8, v6, 5, v8")
    a("v_lshl_add_u32 v9, v4, 3, v7")
    a("v_lshl_add_u32 v8, v9, 8, v8")
    for t in range(4):
        a(f"v_xor_b32 v9, {t}, v7")
        a(f"v_lshl_add_u32 v{aW + t}, v9, 6, v8")
    a("s_lshl_b32 s45, s41, 7")
    a("s_lshl_b32 s46, s40, 5")
    a("s_add_u32 s45, s45, s46")
    a("v_add_u32 v9, s45, v5")
    a(f"v_mul_u32_u24 v{vXO}, 0x3000, v9")
    a(f"v_lshl_add_u32 v{vXO}, v4, 4, v{vXO}")
    a("s_mul_i32 s46, s38, 3072")
    a(f"v_add_u32 v{vXO}, s46, v{vXO}")
    a(f"v_mul_u32_u24 v{vPO}, 0xa00, v9")
    a(f"v_lshl_add_u32 v{vPO}, v4, 4, v{vPO}")
    a(f"s_mul_i32 s46, s38, {PART_SLICE}")
    a("s_lshl_b32 s47, s42, 9")
    a("s_add_u32 s46, s46, s47")
    a(f"v_add_u32 v{vPO}, s46, v{vPO}")

    def oloads(i):
        for s in range(4):
            a(f"buffer_load_dwordx4 {vr(OB[i % 3] + 4 * s, 4)}, v{vXO}, s[12:15], 0 offen offset:{128 * i + 32 * s}")

    oloads(0)
    oloads(1)
    fcount = 0
    for i in range(NST2):
        slot = (i % NS2) * S2
        a("s_barrier")
        if i + 2 < NST2:
            oloads(i + 2)
            a("s_waitcnt vmcnt(8)")
        elif i + 1 < NST2:
            a("s_waitcnt vmcnt(4)")
        else:
            a("s_waitcnt vmcnt(0)")
        items = []
        for s in range(4):
            for t in range(4):
                fr = AF + 4 * (fcount % 12)
                fcount += 1
                reads = []
                for half in range(2):
                    off = slot + (16 * s + 4 * half) * 256
                    reads.append(f"ds_read_b64_tr_b16 {vr(fr + 2 * half, 2)}, v{aW + t} offset:{off}")
                acc = vr(AC + 16 * t, 16)
                c = "0" if (i == 0 and s == 0) else acc
                m = f"v_mfma_f32_32x32x16_bf16 {acc}, {vr(fr, 4)}, {vr(OB[i % 3] + 4 * s, 4)}, {c}"
                items.append((reads, m))
        rolling(a, items, 6)
    a("s_nop 15")
    for t in range(4):
        for q in range(4):
            a(f"buffer_store_dwordx4 {vr(AC + 16 * t + 4 * q, 4)}, v{vPO}, s[16:19], 0 offen offset:{128 * t + 32 * q}")
    a.label("L2_end")
    a("s_endpgm")


K3 = "reduce_kernel"


def gen_reduce(a):
    a.raw(f".globl {K3}")
    a.raw(".p2align 8")
    a.raw(f".type {K3},@function")
    a.label(K3)
    a("s_cmp_ge_u32 s2, 480")
    a("s_cbranch_scc1 L3_end")
    a("s_load_dwordx2 s[28:29], s[0:1], 40")
    a("s_load_dwordx2 s[30:31], s[0:1], 56")
    a("s_lshl_b32 s3, s2, 8")
    a("v_add_u32 v1, s3, v0")
    a("v_lshlrev_b32 v2, 5, v1")
    a("v_lshlrev_b32 v3, 4, v1")
    a("s_waitcnt lgkmcnt(0)")
    srd(a, 28, 1966080, 8)
    a(f"s_add_u32 s32, s30, {PART_OFF}")
    a("s_addc_u32 s33, s31, 0")
    srd(a, 32, 4 * PART_SLICE, 12)
    for k in range(4):
        a(f"s_mov_b32 s{36 + k}, {k * PART_SLICE}")
    for k in range(4):
        a(f"buffer_load_dwordx4 {vr(8 + 8 * k, 4)}, v2, s[12:15], s{36 + k} offen")
        a(f"buffer_load_dwordx4 {vr(12 + 8 * k, 4)}, v2, s[12:15], s{36 + k} offen offset:16")
    a("s_waitcnt vmcnt(4)")
    for e in range(8):
        a(f"v_add_f32 v{8 + e}, v{8 + e}, v{16 + e}")
    a("s_waitcnt vmcnt(0)")
    for e in range(8):
        a(f"v_add_f32 v{24 + e}, v{24 + e}, v{32 + e}")
    for e in range(8):
        a(f"v_add_f32 v{8 + e}, v{8 + e}, v{24 + e}")
    for e in range(4):
        a(f"v_cvt_pk_bf16_f32 v{4 + e}, v{8 + 2 * e}, v{9 + 2 * e}")
    a("buffer_store_dwordx4 v[4:7], v3, s[8:11], 0 offen")
    a.label("L3_end")
    a("s_endpgm")


def kd(name, vgpr, sgpr=102):
    acc = (vgpr + 3) // 4 * 4
    return f""".p2align 6
.amdhsa_kernel {name}
  .amdhsa_next_free_vgpr {vgpr}
  .amdhsa_next_free_sgpr {sgpr}
  .amdhsa_accum_offset {acc}
  .amdhsa_group_segment_fixed_size 0
  .amdhsa_kernarg_size 64
  .amdhsa_user_sgpr_count 2
  .amdhsa_user_sgpr_kernarg_segment_ptr 1
  .amdhsa_system_sgpr_workgroup_id_x 1
.end_amdhsa_kernel
"""


def main():
    a = Asm()
    out = HEADER
    out += f"; @launch kernel={MAIN} grid=(512,1,1) block=(256,1,1) lds={SLOT * NSLOT}\n"
    out += f"; @launch kernel={K2} grid=(240,1,1) block=(320,1,1) lds={S2 * NS2}\n"
    out += f"; @launch kernel={K3} grid=(480,1,1) block=(256,1,1) lds=0\n"
    out += '.amdgcn_target "amdgcn-amd-amdhsa--gfx950"\n.text\n'
    gen_attn(a)
    gen_oproj(a)
    gen_reduce(a)
    out += a.text()
    out += '.section .rodata,"a"\n'
    out += kd(MAIN, 256)
    out += kd(K2, 176)
    out += kd(K3, 40)
    open(OUT, "w").write(out)
    print("wrote", OUT, len(out), "bytes")


if __name__ == "__main__":
    main()
```

```python
import math
import struct
import sys
import os
NOCOMP=int(os.environ.get("NOCOMP","0"))
NOLOAD=int(os.environ.get("NOLOAD","0"))
KVPOL=os.environ.get("KVPOL","nt")
NTOUCH=int(os.environ.get("NTOUCH","0"))
STAMP=int(os.environ.get("STAMP","0"))
MAP=int(os.environ.get("MAP","1"))
ROT=int(os.environ.get("ROT","1"))
STAMPWG=int(os.environ.get("STAMPWG","0"))
STAMP2=int(os.environ.get("STAMP2","0"))

OUT = os.environ.get("OUT", "standalone__mha_block_cached__near_ridge.s")

HEADER = open("standalone__mha_block_cached__near_ridge.s.ref").read().split("; Override launch geometry")[0]

MAIN = "standalone__mha_block_cached__near_ridge_kernel"


def f32bits(x):
    return struct.unpack("<I", struct.pack("<f", x))[0]


class Asm:
    def __init__(self):
        self.lines = []

    def __call__(self, s):
        self.lines.append("    " + s)

    def label(self, l):
        self.lines.append(l + ":")

    def raw(self, s):
        self.lines.append(s)

    def text(self):
        return "\n".join(self.lines) + "\n"


def vr(a, n):
    return f"v[{a}:{a + n - 1}]"


def srd(a, base, nbytes, sreg):
    a(f"s_mov_b32 s{sreg}, s{base}")
    a(f"s_and_b32 s{sreg + 1}, s{base + 1}, 0xffff")
    a(f"s_mov_b32 s{sreg + 2}, {nbytes}")
    a(f"s_mov_b32 s{sreg + 3}, 0x00020000")


_stamp_n = [0]


def stamp(a, on=None):
    if not (STAMP if on is None else on):
        return
    k = _stamp_n[0]
    _stamp_n[0] += 1
    a(f"s_memtime s[{60 + 2 * k}:{61 + 2 * k}]")


def rolling(a, items, window, nslots_reads=None):
    n = len(items)
    nr = [len(it[0]) for it in items]
    for f in range(min(window, n)):
        for r in items[f][0]:
            a(r)
    for f in range(n):
        if f + window < n:
            for r in items[f + window][0]:
                a(r)
        last = min(f + window, n - 1)
        outstanding = sum(nr[f + 1:last + 1])
        assert outstanding <= 15
        a(f"s_waitcnt lgkmcnt({outstanding})")
        a(items[f][1])


SLOT = 24576
NW = 10
NKV = int(os.environ.get("NKV", "32"))
NST = NW + NKV
ARING = [2, 3, 0]
BRING = [4, 5, 1]
REGST = int(os.environ.get("REGST", "0"))


def attn_schedule(L):
    sched = {n: [] for n in range(-1, NST)}
    ring = {"A": ARING, "B": BRING}

    def both(n, kind, idx, slot):
        sched[n] += [(kind, idx, slot, 0), (kind, idx, slot, 1)]

    if L == 0:
        both(-1, "W", 0, 0)
        both(-1, "W", 1, 1)
        for n in range(0, 8):
            both(n, "W", n + 2, (n + 2) % 4)
        rr = {7: [("A", 3)], 8: [("B", 3), ("A", 4)], 9: [("B", 4)]}
    else:
        dma = {-1: [("B", 0), ("B", 1)], 7: [("A", 0)], 8: [("A", 1)], 9: [("A", 2)], 10: [("B", 2)]}
        for n, l in dma.items():
            for (u, t) in l:
                if t < NKV:
                    both(n, u, t, ring[u][t % 3])
        rr = {-1: [("A", 3)], 2: [("B", 3), ("A", 4), ("B", 4)]}
    RL = int(os.environ.get("RLATE", "0"))
    if RL:
        rr = {RL: [("A", 3), ("B", 3)], RL + 1: [("A", 4), ("B", 4)]}
    if REGST:
        for n, l in rr.items():
            for (u, t) in l:
                if t < NKV:
                    sched[n].append(("R", u, t))
        for t in range(1, NKV):
            if t + 2 < NKV:
                sched[NW + t] += [("X", "A", t + 2, ARING[(t + 2) % 3]), ("X", "B", t + 2, BRING[(t + 2) % 3])]
            if t + 4 < NKV:
                sched[NW + t] += [("R", "A", t + 4), ("R", "B", t + 4)]
    else:
        for t in range(1, NKV):
            if t + 2 < NKV:
                sched[NW + t].append(("A", t + 2, ARING[(t + 2) % 3], L))
                sched[NW + t].append(("B", t + 2, BRING[(t + 2) % 3], L))
    return sched


def gen_attn(a):
    a.raw(f".globl {MAIN}")
    a.raw(".p2align 8")
    a.raw(f".type {MAIN},@function")
    a.label(MAIN)
    a("s_cmp_ge_u32 s2, 256")
    a("s_cbranch_scc1 L1_end")
    a("s_load_dwordx8 s[28:35], s[0:1], 0")
    a("s_load_dwordx2 s[36:37], s[0:1], 56")
    a("s_load_dwordx2 s[50:51], s[0:1], 48")
    stamp(a)
    a("v_lshrrev_b32 v1, 6, v0")
    a("v_and_b32 v2, 63, v0")
    a("v_readfirstlane_b32 s40, v1")
    a("s_and_b32 s39, s2, 31")
    a("s_lshr_b32 s38, s2, 5")
    a("s_lshr_b32 s3, s40, 2")
    a("s_and_b32 s40, s40, 3")
    a("s_lshr_b32 s55, s39, 3")
    a("s_mul_i32 s55, s55, 3")
    a("s_add_u32 s55, s55, s38")
    a("s_cmp_ge_u32 s55, 10")
    a("s_cselect_b32 s54, 10, 0")
    a("s_sub_u32 s55, s55, s54")
    if not ROT:
        a("s_mov_b32 s55, 0")
    a("s_waitcnt lgkmcnt(0)")
    srd(a, 28, 1966080, 8)
    srd(a, 30, 201326592, 12)
    srd(a, 32, 201326592, 16)
    srd(a, 34, 7864320, 20)
    srd(a, 36, 18874368, 24)
    a("s_cmp_eq_u32 s40, 3")
    a("s_cbranch_scc0 L1_compute")

    for jj in range(6):
        a(f"v_add_u32 v3, {64 * jj}, v2")
        a("v_mul_u32_u24 v4, 0xaab, v3")
        a("v_lshrrev_b32 v4, 16, v4")
        a("v_mul_u32_u24 v5, 24, v4")
        a("v_sub_u32 v5, v3, v5")
        a("v_lshrrev_b32 v6, 1, v4")
        a("v_and_b32 v7, 7, v6")
        a("v_xor_b32 v7, v7, v5")
        a("v_lshlrev_b32 v7, 4, v7")
        a("v_mul_u32_u24 v8, 0x180, v4")
        a(f"v_add_u32 v{10 + jj}, v7, v8")
        if jj < 3:
            a("v_and_b32 v7, 1, v6")
            a("v_lshlrev_b32 v7, 2, v7")
            a("v_xor_b32 v7, v7, v5")
            a("v_lshlrev_b32 v7, 4, v7")
            a(f"v_add_u32 v{16 + jj}, v7, v8")
            a("v_mul_u32_u24 v8, 0x3000, v4")
            a(f"v_add_u32 v{19 + jj}, v7, v8")
    a("s_lshl_b32 s41, s38, 5")
    a("s_add_u32 s41, s41, s39")
    a("s_mul_i32 s41, s41, 393216")
    a(f"s_add_u32 s42, s41, {256 * 393216}")
    a("s_mul_i32 s43, s39, 384")
    a("s_mul_i32 s45, s3, 12288")
    a("s_mul_i32 s47, s55, 786432")
    a("v_lshlrev_b32 v22, 4, v2")
    a("v_add_u32 v22, s45, v22")
    a("s_cmp_eq_u32 s3, 0")
    a("s_cbranch_scc0 L1_loader1")
    for L in range(2):
        sched = attn_schedule(L)
        if L == 1:
            a.label("L1_loader1")
        issued = []
        state = {"out": 0}

        def waitfor(need):
            last = max(i for i, x in enumerate(issued) if x in need)
            cnt = 12 * (len(issued) - 1 - last)
            if cnt < state["out"]:
                a(f"s_waitcnt vmcnt({cnt})")
                state["out"] = cnt

        def kvsrc(u, idx, emit, hh):
            base = "s41" if u == "A" else "s42"
            a(f"s_add_u32 s46, {base}, {idx * 12288}")
            j = 0
            if hh == 0:
                for half in range(2):
                    for jj in range(6):
                        emit(j, 10 + jj, "s[12:15]")
                        j += 1
                        a("s_add_u32 s46, s46, 6144" if jj == 5 else "s_nop 0")
            else:
                for g in range(4):
                    for jj in range(3):
                        emit(j, 16 + jj, "s[16:19]")
                        j += 1
                        a("s_add_u32 s46, s46, 3072" if jj == 2 else "s_nop 0")

        def rbase(u, t):
            return 32 + 48 * ((0 if u == "A" else 1) + 2 * (t & 1))

        def issue(ev):
            if NOLOAD:
                return
            kind = ev[0]
            if kind == "X":
                _, u, t, slot = ev
                waitfor([("R" + u, t)])
                a(f"v_add_u32 v23, {slot * SLOT}, v22")
                rb = rbase(u, t)
                for j in range(12):
                    a(f"ds_write_b128 v23, {vr(rb + 4 * j, 4)} offset:{1024 * j}")
                return
            if state["out"] + 12 > 63:
                state["out"] = 48
                a("s_waitcnt vmcnt(48)")
            state["out"] += 12
            if kind == "R":
                _, u, t = ev
                rb = rbase(u, t)
                a("s_waitcnt lgkmcnt(0)")
                kvsrc(u, t, lambda j, v, sr: a(f"buffer_load_dwordx4 {vr(rb + 4 * j, 4)}, v{v}, {sr}, s46 offen {KVPOL}"), L)
                issued.append(("R" + u, t))
                return
            _, idx, slot, hh = ev
            a(f"s_mov_b32 m0, {slot * SLOT + hh * 12288}")
            if kind == "W":
                a("s_add_u32 s46, s43, s47")
                if hh == 1:
                    a("s_add_u32 s46, s46, 393216")
                    a("s_add_u32 s47, s47, 786432")
                    a("s_cmp_eq_u32 s47, 7864320")
                    a("s_cselect_b32 s47, 0, s47")
                for g in range(4):
                    for jj in range(3):
                        a(f"buffer_load_dwordx4 v{19 + jj}, s[20:23], s46 offen lds")
                        a("s_add_u32 m0, m0, 0x400")
                        a("s_add_u32 s46, s46, 98304" if jj == 2 else "s_nop 0")
            else:
                def em(j, v, sr):
                    a(f"buffer_load_dwordx4 v{v}, {sr}, s46 offen {KVPOL} lds")
                    a("s_add_u32 m0, m0, 0x400")
                kvsrc(kind, idx, em, hh)
            issued.append((kind, idx))

        for it in sched[-1]:
            issue(it)
        for n in range(NST):
            need = [x for x in ([("W", n)] if n < NW else [(u, n - NW) for u in "AB"]) if x in issued]
            if not NOLOAD:
                if need:
                    waitfor(need)
                a("s_waitcnt lgkmcnt(0)")
            a("s_barrier")
            for it in sched[n]:
                issue(it)
        a("s_endpgm")

    QF = 16
    OA = 64
    SA = 160
    PF = 176
    AF = 184
    aWE, aWO, aVE, aVO = 10, 11, 12, 13
    aK = 232
    cE, cO = 236, 237
    cK = 238
    vM, vL, vAl, vMC, vT0, vT1, vPS, vXO, vOO = 242, 243, 244, 246, 247, 248, 249, 250, 251
    a.label("L1_compute")
    if NOCOMP:
        for i in range(NST):
            a("s_barrier")
        a("s_endpgm")
    a("v_and_b32 v3, 15, v2")
    a("v_lshrrev_b32 v4, 5, v2")
    a("v_and_b32 v5, 31, v2")
    a("v_lshrrev_b32 v6, 4, v2")
    a("v_and_b32 v6, 1, v6")
    a("v_lshrrev_b32 v7, 2, v3")
    a("v_and_b32 v8, 3, v3")
    a("v_lshlrev_b32 v8, 3, v8")
    a("v_lshl_add_u32 v8, v6, 5, v8")
    a("v_lshrrev_b32 v9, 3, v3")
    a("v_lshlrev_b32 v9, 6, v9")
    a("v_lshl_add_u32 v14, v4, 3, v7")
    a("v_mul_u32_u24 v14, 0x180, v14")
    a("v_add_u32 v14, v14, v8")
    a(f"v_add_u32 v{aWE}, v14, v9")
    a(f"v_xor_b32 v15, 64, v9")
    a(f"v_add_u32 v{aWO}, v14, v15")
    a("v_lshl_add_u32 v14, v4, 2, v7")
    a("v_mul_u32_u24 v14, 0x180, v14")
    a("v_add_u32 v14, v14, v8")
    a(f"v_add_u32 v{aVE}, v14, v9")
    a(f"v_add_u32 v{aVO}, v14, v15")
    a("v_lshrrev_b32 v14, 1, v5")
    a("v_and_b32 v14, 7, v14")
    a("v_mul_u32_u24 v15, 0x180, v5")
    for q4 in range(4):
        a(f"v_add_u32 v9, {2 * q4}, v4")
        a("v_xor_b32 v9, v9, v14")
        a(f"v_lshl_add_u32 v{aK + q4}, v9, 4, v15")
    a("s_lshl_b32 s45, s3, 3")
    a("s_add_u32 s45, s45, s38")
    a("s_mul_i32 s45, s45, 96")
    a("s_lshl_b32 s46, s40, 5")
    a("s_add_u32 s45, s45, s46")
    a("v_add_u32 v14, s45, v5")
    a("v_lshlrev_b32 v15, 4, v4")
    a(f"v_mul_u32_u24 v{vXO}, 0x500, v14")
    a(f"v_add_u32 v{vXO}, v{vXO}, v15")
    a("s_lshr_b32 s46, s45, 5")
    a("s_mul_i32 s46, s46, 384")
    a("s_mul_i32 s47, s39, 12")
    a("s_add_u32 s46, s46, s47")
    a("s_lshl_b32 s46, s46, 10")
    a(f"v_lshlrev_b32 v{vOO}, 4, v2")
    a(f"v_add_u32 v{vOO}, s46, v{vOO}")
    a(f"v_mov_b32 v{vM}, 0xff800000")
    a(f"v_mov_b32 v{vL}, 0")
    cval = (192 ** -0.5) * math.log2(math.e)
    a(f"s_mov_b32 s49, 0x{f32bits(cval):08x}")
    a("s_cmp_eq_u32 s3, 0")
    for k, sr in enumerate((47, 52, 53)):
        a(f"s_mov_b32 s{sr}, {BRING[k] * SLOT}")
        a(f"s_cselect_b32 s{sr}, {ARING[k] * SLOT}, s{sr}")

    XB = [16, 32, 48, 160]
    XD = 3

    a("s_lshl_b32 s54, s55, 7")

    def xloads(i):
        for s in range(4):
            a(f"buffer_load_dwordx4 {vr(XB[i % 4] + 4 * s, 4)}, v{vXO}, s[8:11], s54 offen offset:{32 * s}")
        a("s_add_u32 s54, s54, 128")
        a("s_cmp_eq_u32 s54, 1280")
        a("s_cselect_b32 s54, 0, s54")

    for i in range(XD):
        xloads(i)
    for i in range(NW):
        slot = (i % 4) * SLOT
        a("s_barrier")
        stamp(a)
        a(f"v_add_u32 v{cE}, {slot}, v{aWE}")
        a(f"v_add_u32 v{cO}, {slot}, v{aWO}")
        if i + XD < NW:
            xloads(i + XD)
        a(f"s_waitcnt vmcnt({4 * (min(i + XD, NW - 1) - i)})")
        items = []
        f = 0
        for s in range(4):
            for t in range(6):
                fr = AF + 4 * (f % 12)
                areg = cE if t % 2 == 0 else cO
                reads = []
                for half in range(2):
                    off = (16 * s + 4 * half) * 384 + 128 * (t >> 1)
                    reads.append(f"ds_read_b64_tr_b16 {vr(fr + 2 * half, 2)}, v{areg} offset:{off}")
                acc = vr(OA + 16 * t, 16)
                c = "0" if (i == 0 and s == 0) else acc
                m = f"v_mfma_f32_32x32x16_bf16 {acc}, {vr(fr, 4)}, {vr(XB[i % 4] + 4 * s, 4)}, {c}"
                items.append((reads, m))
                f += 1
        rolling(a, items, 6)
    stamp(a)
    a("s_nop 15")
    for t in range(6):
        for g2 in range(2):
            fq = QF + 4 * (2 * t + g2)
            src = OA + 16 * t + 8 * g2
            for k in range(4):
                a(f"v_cvt_pk_bf16_f32 v{fq + k}, v{src + 2 * k}, v{src + 2 * k + 1}")
    a("s_nop 1")
    for ks in range(12):
        fq = QF + 4 * ks
        a(f"v_permlane32_swap_b32 v{fq}, v{fq + 2}")
        a(f"v_permlane32_swap_b32 v{fq + 1}, v{fq + 3}")
    for r in range(96):
        a(f"v_mov_b32 v{OA + r}, 0")
    a("s_mov_b32 s48, 0")

    stamp(a)
    a.label("L1_kv_loop")
    a("s_barrier")
    for q4 in range(4):
        a(f"v_add_u32 v{cK + q4}, s47, v{aK + q4}")
    a(f"v_add_u32 v{cE}, s47, v{aVE}")
    a(f"v_add_u32 v{cO}, s47, v{aVO}")
    for s in range(12):
        a(f"ds_read_b128 {vr(AF + 4 * s, 4)}, v{cK + (s & 3)} offset:{128 * (s >> 2)}")
    sacc = vr(SA, 16)
    for s in range(12):
        a(f"s_waitcnt lgkmcnt({11 - s})")
        c = "0" if s == 0 else sacc
        a(f"v_mfma_f32_32x32x16_bf16 {sacc}, {vr(AF + 4 * s, 4)}, {vr(QF + 4 * s, 4)}, {c}")
    vitems = []
    for f in range(12):
        s, t = f // 6, f % 6
        fr = AF + 4 * f
        areg = cE if t % 2 == 0 else cO
        reads = []
        for half in range(2):
            off = 12288 + (16 * s + 8 * half) * 384 + 128 * (t >> 1)
            reads.append(f"ds_read_b64_tr_b16 {vr(fr + 2 * half, 2)}, v{areg} offset:{off}")
        acc = vr(OA + 16 * t, 16)
        m = f"v_mfma_f32_32x32x16_bf16 {acc}, {vr(fr, 4)}, {vr(PF + 4 * s, 4)}, {acc}"
        vitems.append((reads, m))
    for f in range(6):
        for r in vitems[f][0]:
            a(r)
    a("s_nop 3")
    a(f"v_max3_f32 v{vT0}, v{SA}, v{SA + 1}, v{SA + 2}")
    a(f"v_max3_f32 v{vT1}, v{SA + 3}, v{SA + 4}, v{SA + 5}")
    a(f"v_max3_f32 v{vT0}, v{vT0}, v{SA + 6}, v{SA + 7}")
    a(f"v_max3_f32 v{vT1}, v{vT1}, v{SA + 8}, v{SA + 9}")
    a(f"v_max3_f32 v{vT0}, v{vT0}, v{SA + 10}, v{SA + 11}")
    a(f"v_max3_f32 v{vT1}, v{vT1}, v{SA + 12}, v{SA + 13}")
    a(f"v_max3_f32 v{vT0}, v{vT0}, v{SA + 14}, v{SA + 15}")
    a(f"v_max3_f32 v{vT0}, v{vT0}, v{vT1}, v{vM}")
    a(f"v_mov_b32 v{vT1}, v{vT0}")
    a("s_nop 1")
    a(f"v_permlane32_swap_b32 v{vT0}, v{vT1}")
    a("s_nop 1")
    a(f"v_max_f32 v{vT0}, v{vT0}, v{vT1}")
    a(f"v_sub_f32 v{vT1}, v{vM}, v{vT0}")
    a(f"v_mul_f32 v{vT1}, s49, v{vT1}")
    a(f"v_exp_f32 v{vAl}, v{vT1}")
    a(f"v_mov_b32 v{vM}, v{vT0}")
    a(f"v_mul_f32 v{vMC}, s49, v{vT0}")
    a(f"v_mov_b32 v{vAl + 1}, v{vAl}")
    for r in range(16):
        a(f"v_fma_f32 v{SA + r}, v{SA + r}, s49, -v{vMC}")
    for r in range(16):
        a(f"v_exp_f32 v{SA + r}, v{SA + r}")
    for r in range(48):
        a(f"v_pk_mul_f32 {vr(OA + 2 * r, 2)}, {vr(OA + 2 * r, 2)}, {vr(vAl, 2)}")
    a(f"v_add_f32 v{vPS}, v{SA}, v{SA + 1}")
    a(f"v_add_f32 v{vT0}, v{SA + 2}, v{SA + 3}")
    for r in range(4, 16, 2):
        a(f"v_add_f32 v{vPS}, v{vPS}, v{SA + r}")
        a(f"v_add_f32 v{vT0}, v{vT0}, v{SA + r + 1}")
    a(f"v_add_f32 v{vPS}, v{vPS}, v{vT0}")
    a(f"v_fma_f32 v{vL}, v{vL}, v{vAl}, v{vPS}")
    for k in range(8):
        a(f"v_cvt_pk_bf16_f32 v{PF + k}, v{SA + 2 * k}, v{SA + 2 * k + 1}")
    a("s_nop 1")
    for f in range(12):
        if f + 6 < 12:
            for r in vitems[f + 6][0]:
                a(r)
        last = min(f + 6, 11)
        a(f"s_waitcnt lgkmcnt({2 * (last - f)})")
        a(vitems[f][1])
    a("s_mov_b32 s46, s47")
    a("s_mov_b32 s47, s52")
    a("s_mov_b32 s52, s53")
    a("s_mov_b32 s53, s46")
    a("s_add_u32 s48, s48, 1")
    a(f"s_cmp_lt_u32 s48, {NKV}")
    a("s_cbranch_scc1 L1_kv_loop")

    stamp(a)
    a(f"v_mov_b32 v{vT1}, v{vL}")
    a("s_nop 1")
    a(f"v_permlane32_swap_b32 v{vL}, v{vT1}")
    a("s_nop 1")
    a(f"v_add_f32 v{vL}, v{vL}, v{vT1}")
    a(f"v_rcp_f32 v{vAl}, v{vL}")
    a("s_nop 7")
    a(f"v_mov_b32 v{vAl + 1}, v{vAl}")
    for r in range(48):
        a(f"v_pk_mul_f32 {vr(OA + 2 * r, 2)}, {vr(OA + 2 * r, 2)}, {vr(vAl, 2)}")
    for t in range(6):
        for g2 in range(2):
            fq = QF + 4 * (2 * t + g2)
            src = OA + 16 * t + 8 * g2
            for k in range(4):
                a(f"v_cvt_pk_bf16_f32 v{fq + k}, v{src + 2 * k}, v{src + 2 * k + 1}")
    a("s_nop 1")
    for ks in range(12):
        fq = QF + 4 * ks
        a(f"v_permlane32_swap_b32 v{fq}, v{fq + 2}")
        a(f"v_permlane32_swap_b32 v{fq + 1}, v{fq + 3}")
    a("s_nop 1")
    a("s_mov_b32 s45, 4096")
    a("s_mov_b32 s46, 8192")
    for ks in range(12):
        fq = QF + 4 * ks
        so = ["0", "s45", "s46"][ks >> 2]
        a(f"buffer_store_dwordx4 {vr(fq, 4)}, v{vOO}, s[24:27], {so} offen offset:{1024 * (ks & 3)}")
    if STAMP:
        a("s_waitcnt vmcnt(0)")
        stamp(a)
        a("s_waitcnt lgkmcnt(0)")
        a(f"s_cmp_eq_u32 s2, {STAMPWG}")
        a("s_cbranch_scc0 L1_end")
        a("s_cmp_eq_u32 s40, 0")
        a("s_cbranch_scc0 L1_end")
        a("s_cmp_eq_u32 s3, 0")
        a("s_cbranch_scc0 L1_end")
        srd(a, 50, 256, 56)
        a("v_mov_b32 v1, 0")
        for k in range(_stamp_n[0]):
            a(f"s_sub_u32 s55, s{60 + 2 * k}, s60")
            a("v_mov_b32 v3, s55")
            a(f"buffer_store_dword v3, v1, s[56:59], 0 offen offset:{4 * k}")
    a.label("L1_end")
    a("s_endpgm")


K2 = "oproj_kernel"
S2 = 16384
NS2 = 8
NST2 = 24
OD2 = 7
PART_OFF = 18874368
PART_SLICE = 3932160


def gen_oproj(a):
    a.raw(f".globl {K2}")
    a.raw(".p2align 8")
    a.raw(f".type {K2},@function")
    a.label(K2)
    a("s_cmp_ge_u32 s2, 240")
    a("s_cbranch_scc1 L2_end")
    a("s_load_dwordx2 s[28:29], s[0:1], 32")
    a("s_load_dwordx2 s[30:31], s[0:1], 56")
    a("s_load_dwordx2 s[50:51], s[0:1], 48")
    _stamp_n[0] = 0
    stamp(a, STAMP2)
    a("v_lshrrev_b32 v1, 6, v0")
    a("v_and_b32 v2, 63, v0")
    a("v_readfirstlane_b32 s40, v1")
    a("s_and_b32 s38, s2, 3")
    a("s_lshr_b32 s39, s2, 2")
    a("s_mul_i32 s41, s39, 0xcccd")
    a("s_lshr_b32 s41, s41, 18")
    a("s_mul_i32 s42, s41, 5")
    a("s_sub_u32 s42, s39, s42")
    a("s_waitcnt lgkmcnt(0)")
    srd(a, 28, 7864320, 8)
    srd(a, 30, 18874368, 12)
    a(f"s_add_u32 s32, s30, {PART_OFF}")
    a("s_addc_u32 s33, s31, 0")
    srd(a, 32, 4 * PART_SLICE, 16)
    a("s_cmp_ge_u32 s40, 4")
    a("s_cbranch_scc0 L2_compute")
    a("v_lshrrev_b32 v3, 4, v2")
    a("v_and_b32 v4, 15, v2")
    a("v_lshlrev_b32 v5, 2, v3")
    a("v_xor_b32 v4, v4, v5")
    a("v_lshlrev_b32 v4, 4, v4")
    a("v_mul_u32_u24 v5, 0x500, v3")
    a("v_add_u32 v10, v4, v5")
    a("s_sub_u32 s43, s40, 4")
    a("s_mul_i32 s45, s38, 1966080")
    a("s_lshl_b32 s46, s42, 8")
    a("s_add_u32 s45, s45, s46")
    a("s_mul_i32 s46, s43, 40960")
    a("s_add_u32 s45, s45, s46")
    a("s_lshl_b32 s44, s43, 13")

    def issue(i):
        a(f"s_add_u32 m0, s44, {(i % NS2) * S2}")
        a("s_nop 0")
        for jj in range(8):
            a("buffer_load_dwordx4 v10, s[8:11], s45 offen lds")
            a("s_add_u32 m0, m0, 0x400")
            a(f"s_add_u32 s45, s45, {5120 if jj < 7 else 5120 + 40960}")

    for i in range(6):
        issue(i)
    nissued = 6
    for n in range(NST2 // 2):
        a(f"s_waitcnt vmcnt({8 * (nissued - 2 * n - 2)})")
        a("s_barrier")
        for _ in range(2):
            if nissued < NST2:
                issue(nissued)
                nissued += 1
    a("s_endpgm")
    OB = [16 + 16 * i for i in range(8)]
    AC = 144
    AF = 208
    aW = 10
    vXO, vPO = 14, 15
    a.label("L2_compute")
    a("v_and_b32 v3, 15, v2")
    a("v_lshrrev_b32 v4, 5, v2")
    a("v_and_b32 v5, 31, v2")
    a("v_lshrrev_b32 v6, 4, v2")
    a("v_and_b32 v6, 1, v6")
    a("v_lshrrev_b32 v7, 2, v3")
    a("v_and_b32 v8, 3, v3")
    a("v_lshlrev_b32 v8, 3, v8")
    a("v_lshl_add_u32 v8, v6, 5, v8")
    a("v_lshl_add_u32 v9, v4, 3, v7")
    a("v_lshl_add_u32 v8, v9, 8, v8")
    for t in range(4):
        a(f"v_xor_b32 v9, {t}, v7")
        a(f"v_lshl_add_u32 v{aW + t}, v9, 6, v8")
    a("s_lshl_b32 s45, s41, 7")
    a("s_lshl_b32 s46, s40, 5")
    a("s_add_u32 s45, s45, s46")
    a("v_add_u32 v9, s45, v5")
    a("s_lshr_b32 s46, s45, 5")
    a("s_mul_i32 s46, s46, 384")
    a("s_mul_i32 s47, s38, 96")
    a("s_add_u32 s46, s46, s47")
    a("s_lshl_b32 s48, s46, 10")
    a(f"v_lshlrev_b32 v{vXO}, 4, v2")
    a(f"s_mul_i32 s46, s38, {PART_SLICE}")
    a("s_lshl_b32 s47, s39, 2")
    a("s_add_u32 s47, s47, s40")
    a("s_lshl_b32 s47, s47, 14")
    a("s_add_u32 s46, s46, s47")
    a(f"v_lshlrev_b32 v{vPO}, 4, v2")
    a(f"v_add_u32 v{vPO}, s46, v{vPO}")
    for t in range(4):
        a(f"v_add_u32 v{3 + t}, 0x10000, v{aW + t}")

    def oloads(i):
        for s in range(4):
            a(f"buffer_load_dwordx4 {vr(OB[i % 8] + 4 * s, 4)}, v{vXO}, s[12:15], s48 offen offset:{1024 * s}")
        a("s_add_u32 s48, s48, 4096")

    for i in range(OD2):
        oloads(i)
    fcount = 0
    for i in range(NST2):
        sl = i % NS2
        abase = aW if sl < 4 else 3
        slot = (sl % 4) * S2
        if i % 2 == 0:
            a("s_barrier")
            stamp(a, STAMP2)
        if i + OD2 < NST2:
            oloads(i + OD2)
        a(f"s_waitcnt vmcnt({4 * (min(i + OD2, NST2 - 1) - i)})")
        items = []
        for s in range(4):
            for t in range(4):
                fr = AF + 4 * (fcount % 12)
                fcount += 1
                reads = []
                for half in range(2):
                    off = slot + (16 * s + 4 * half) * 256
                    reads.append(f"ds_read_b64_tr_b16 {vr(fr + 2 * half, 2)}, v{abase + t} offset:{off}")
                acc = vr(AC + 16 * t, 16)
                c = "0" if (i == 0 and s == 0) else acc
                m = f"v_mfma_f32_32x32x16_bf16 {acc}, {vr(fr, 4)}, {vr(OB[i % 8] + 4 * s, 4)}, {c}"
                items.append((reads, m))
        rolling(a, items, 6)
    a("s_nop 15")
    for t in range(4):
        a(f"s_mov_b32 s45, {4096 * t}")
        for q in range(4):
            a(f"buffer_store_dwordx4 {vr(AC + 16 * t + 4 * q, 4)}, v{vPO}, s[16:19], s45 offen offset:{1024 * q}")
    if STAMP2:
        stamp(a, STAMP2)
        a("s_waitcnt vmcnt(0)")
        stamp(a, STAMP2)
        a("s_waitcnt lgkmcnt(0)")
        a(f"s_cmp_eq_u32 s2, {STAMPWG}")
        a("s_cbranch_scc0 L2_end")
        a("s_cmp_eq_u32 s40, 0")
        a("s_cbranch_scc0 L2_end")
        srd(a, 50, 256, 56)
        a("v_mov_b32 v1, 0")
        for k in range(_stamp_n[0]):
            a(f"s_sub_u32 s55, s{60 + 2 * k}, s60")
            a("v_mov_b32 v3, s55")
            a(f"buffer_store_dword v3, v1, s[56:59], 0 offen offset:{4 * k}")
    a.label("L2_end")
    a("s_endpgm")


K3 = "reduce_kernel"


def gen_reduce(a):
    a.raw(f".globl {K3}")
    a.raw(".p2align 8")
    a.raw(f".type {K3},@function")
    a.label(K3)
    a("s_cmp_ge_u32 s2, 960")
    a("s_cbranch_scc1 L3_end")
    a("s_load_dwordx2 s[28:29], s[0:1], 40")
    a("s_load_dwordx2 s[30:31], s[0:1], 56")
    a("s_lshl_b32 s3, s2, 8")
    a("v_add_u32 v1, s3, v0")
    a("v_lshlrev_b32 v2, 4, v1")
    a("s_lshr_b32 s39, s2, 4")
    a("s_mul_i32 s41, s39, 0xcccd")
    a("s_lshr_b32 s41, s41, 18")
    a("s_mul_i32 s42, s41, 5")
    a("s_sub_u32 s42, s39, s42")
    a("s_lshr_b32 s43, s2, 2")
    a("s_and_b32 s43, s43, 3")
    a("s_and_b32 s44, s2, 3")
    a("s_lshl_b32 s45, s41, 7")
    a("s_lshl_b32 s46, s43, 5")
    a("s_add_u32 s45, s45, s46")
    a("s_lshl_b32 s46, s42, 7")
    a("s_lshl_b32 s47, s44, 5")
    a("s_add_u32 s46, s46, s47")
    a("v_and_b32 v3, 31, v0")
    a("v_add_u32 v3, s45, v3")
    a("v_mul_u32_u24 v3, 0x500, v3")
    a("v_lshrrev_b32 v4, 6, v0")
    a("v_lshlrev_b32 v4, 3, v4")
    a("v_bfe_u32 v5, v0, 5, 1")
    a("v_lshl_add_u32 v4, v5, 2, v4")
    a("v_add_u32 v4, s46, v4")
    a("v_lshl_add_u32 v3, v4, 1, v3")
    a("s_waitcnt lgkmcnt(0)")
    srd(a, 28, 1966080, 8)
    a(f"s_add_u32 s32, s30, {PART_OFF}")
    a("s_addc_u32 s33, s31, 0")
    srd(a, 32, 4 * PART_SLICE, 12)
    for k in range(1, 4):
        a(f"s_mov_b32 s{36 + k}, {k * PART_SLICE}")
    for k in range(4):
        so = "0" if k == 0 else f"s{36 + k}"
        a(f"buffer_load_dwordx4 {vr(8 + 4 * k, 4)}, v2, s[12:15], {so} offen")
    a("s_waitcnt vmcnt(2)")
    for e in range(4):
        a(f"v_add_f32 v{8 + e}, v{8 + e}, v{12 + e}")
    a("s_waitcnt vmcnt(0)")
    for e in range(4):
        a(f"v_add_f32 v{16 + e}, v{16 + e}, v{20 + e}")
    for e in range(4):
        a(f"v_add_f32 v{8 + e}, v{8 + e}, v{16 + e}")
    for e in range(2):
        a(f"v_cvt_pk_bf16_f32 v{6 + e}, v{8 + 2 * e}, v{9 + 2 * e}")
    a("buffer_store_dwordx2 v[6:7], v3, s[8:11], 0 offen")
    a.label("L3_end")
    a("s_endpgm")


def kd(name, vgpr, sgpr=102):
    acc = (vgpr + 3) // 4 * 4
    return f""".p2align 6
.amdhsa_kernel {name}
  .amdhsa_next_free_vgpr {vgpr}
  .amdhsa_next_free_sgpr {sgpr}
  .amdhsa_accum_offset {acc}
  .amdhsa_group_segment_fixed_size 0
  .amdhsa_kernarg_size 64
  .amdhsa_user_sgpr_count 2
  .amdhsa_user_sgpr_kernarg_segment_ptr 1
  .amdhsa_system_sgpr_workgroup_id_x 1
.end_amdhsa_kernel
"""


def main():
    a = Asm()
    out = HEADER
    out += f"; @launch kernel={MAIN} grid=(256,1,1) block=(512,1,1) lds={SLOT * 6}\n"
    out += f"; @launch kernel={K2} grid=(240,1,1) block=(384,1,1) lds={S2 * NS2}\n"
    out += f"; @launch kernel={K3} grid=(960,1,1) block=(256,1,1) lds=0\n"
    out += '.amdgcn_target "amdgcn-amd-amdhsa--gfx950"\n.text\n'
    gen_attn(a)
    gen_oproj(a)
    gen_reduce(a)
    out += a.text()
    out += '.section .rodata,"a"\n'
    out += kd(MAIN, 256)
    out += kd(K2, 256)
    out += kd(K3, 24)
    open(OUT, "w").write(out)
    print("wrote", OUT, len(out), "bytes")


if __name__ == "__main__":
    main()
```

```python
import math
import struct
import sys
import os
NOCOMP=int(os.environ.get("NOCOMP","0"))
NOLOAD=int(os.environ.get("NOLOAD","0"))
KVPOL=os.environ.get("KVPOL","nt")
NTOUCH=int(os.environ.get("NTOUCH","0"))
STAMP=int(os.environ.get("STAMP","0"))
MAP=int(os.environ.get("MAP","1"))
ROT=int(os.environ.get("ROT","1"))
STAMPWG=int(os.environ.get("STAMPWG","0"))
STAMP2=int(os.environ.get("STAMP2","0"))
FUSERED=int(os.environ.get("FUSERED","1"))

OUT = os.environ.get("OUT", "standalone__mha_block_cached__near_ridge.s")

HEADER = open("standalone__mha_block_cached__near_ridge.s.ref").read().split("; Override launch geometry")[0]

MAIN = "standalone__mha_block_cached__near_ridge_kernel"


def f32bits(x):
    return struct.unpack("<I", struct.pack("<f", x))[0]


class Asm:
    def __init__(self):
        self.lines = []

    def __call__(self, s):
        self.lines.append("    " + s)

    def label(self, l):
        self.lines.append(l + ":")

    def raw(self, s):
        self.lines.append(s)

    def text(self):
        return "\n".join(self.lines) + "\n"


def vr(a, n):
    return f"v[{a}:{a + n - 1}]"


def srd(a, base, nbytes, sreg):
    a(f"s_mov_b32 s{sreg}, s{base}")
    a(f"s_and_b32 s{sreg + 1}, s{base + 1}, 0xffff")
    a(f"s_mov_b32 s{sreg + 2}, {nbytes}")
    a(f"s_mov_b32 s{sreg + 3}, 0x00020000")


_stamp_n = [0]


def stamp(a, on=None):
    if not (STAMP if on is None else on):
        return
    k = _stamp_n[0]
    _stamp_n[0] += 1
    a(f"s_memtime s[{60 + 2 * k}:{61 + 2 * k}]")


def rolling(a, items, window, nslots_reads=None):
    n = len(items)
    nr = [len(it[0]) for it in items]
    for f in range(min(window, n)):
        for r in items[f][0]:
            a(r)
    for f in range(n):
        if f + window < n:
            for r in items[f + window][0]:
                a(r)
        last = min(f + window, n - 1)
        outstanding = sum(nr[f + 1:last + 1])
        assert outstanding <= 15
        a(f"s_waitcnt lgkmcnt({outstanding})")
        a(items[f][1])


SLOT = 24576
NW = 10
NKV = int(os.environ.get("NKV", "32"))
NST = NW + NKV
ARING = [2, 3, 0]
BRING = [4, 5, 1]
REGST = int(os.environ.get("REGST", "0"))


def attn_schedule(L):
    sched = {n: [] for n in range(-1, NST)}
    ring = {"A": ARING, "B": BRING}

    def both(n, kind, idx, slot):
        sched[n] += [(kind, idx, slot, 0), (kind, idx, slot, 1)]

    if L == 0:
        both(-1, "W", 0, 0)
        both(-1, "W", 1, 1)
        for n in range(0, 8):
            both(n, "W", n + 2, (n + 2) % 4)
        rr = {7: [("A", 3)], 8: [("B", 3), ("A", 4)], 9: [("B", 4)]}
    else:
        dma = {-1: [("B", 0), ("B", 1)], 7: [("A", 0)], 8: [("A", 1)], 9: [("A", 2)], 10: [("B", 2)]}
        for n, l in dma.items():
            for (u, t) in l:
                if t < NKV:
                    both(n, u, t, ring[u][t % 3])
        rr = {-1: [("A", 3)], 2: [("B", 3), ("A", 4), ("B", 4)]}
    RL = int(os.environ.get("RLATE", "0"))
    if RL:
        rr = {RL: [("A", 3), ("B", 3)], RL + 1: [("A", 4), ("B", 4)]}
    if REGST:
        for n, l in rr.items():
            for (u, t) in l:
                if t < NKV:
                    sched[n].append(("R", u, t))
        for t in range(1, NKV):
            if t + 2 < NKV:
                sched[NW + t] += [("X", "A", t + 2, ARING[(t + 2) % 3]), ("X", "B", t + 2, BRING[(t + 2) % 3])]
            if t + 4 < NKV:
                sched[NW + t] += [("R", "A", t + 4), ("R", "B", t + 4)]
    else:
        for t in range(1, NKV):
            if t + 2 < NKV:
                sched[NW + t].append(("A", t + 2, ARING[(t + 2) % 3], L))
                sched[NW + t].append(("B", t + 2, BRING[(t + 2) % 3], L))
    return sched


def gen_attn(a):
    a.raw(f".globl {MAIN}")
    a.raw(".p2align 8")
    a.raw(f".type {MAIN},@function")
    a.label(MAIN)
    a("s_cmp_ge_u32 s2, 256")
    a("s_cbranch_scc1 L1_end")
    a("s_load_dwordx8 s[28:35], s[0:1], 0")
    a("s_load_dwordx2 s[36:37], s[0:1], 56")
    a("s_load_dwordx2 s[50:51], s[0:1], 48")
    stamp(a)
    a("v_lshrrev_b32 v1, 6, v0")
    a("v_and_b32 v2, 63, v0")
    a("v_readfirstlane_b32 s40, v1")
    a("s_and_b32 s39, s2, 31")
    a("s_lshr_b32 s38, s2, 5")
    a("s_lshr_b32 s3, s40, 2")
    a("s_and_b32 s40, s40, 3")
    a("s_lshr_b32 s55, s39, 3")
    a("s_mul_i32 s55, s55, 3")
    a("s_add_u32 s55, s55, s38")
    a("s_cmp_ge_u32 s55, 10")
    a("s_cselect_b32 s54, 10, 0")
    a("s_sub_u32 s55, s55, s54")
    if not ROT:
        a("s_mov_b32 s55, 0")
    a("s_waitcnt lgkmcnt(0)")
    srd(a, 28, 1966080, 8)
    srd(a, 30, 201326592, 12)
    srd(a, 32, 201326592, 16)
    srd(a, 34, 7864320, 20)
    srd(a, 36, 18874368, 24)
    a("s_cmp_eq_u32 s40, 3")
    a("s_cbranch_scc0 L1_compute")

    for jj in range(6):
        a(f"v_add_u32 v3, {64 * jj}, v2")
        a("v_mul_u32_u24 v4, 0xaab, v3")
        a("v_lshrrev_b32 v4, 16, v4")
        a("v_mul_u32_u24 v5, 24, v4")
        a("v_sub_u32 v5, v3, v5")
        a("v_lshrrev_b32 v6, 1, v4")
        a("v_and_b32 v7, 7, v6")
        a("v_xor_b32 v7, v7, v5")
        a("v_lshlrev_b32 v7, 4, v7")
        a("v_mul_u32_u24 v8, 0x180, v4")
        a(f"v_add_u32 v{10 + jj}, v7, v8")
        if jj < 3:
            a("v_and_b32 v7, 1, v6")
            a("v_lshlrev_b32 v7, 2, v7")
            a("v_xor_b32 v7, v7, v5")
            a("v_lshlrev_b32 v7, 4, v7")
            a(f"v_add_u32 v{16 + jj}, v7, v8")
            a("v_mul_u32_u24 v8, 0x3000, v4")
            a(f"v_add_u32 v{19 + jj}, v7, v8")
    a("s_lshl_b32 s41, s38, 5")
    a("s_add_u32 s41, s41, s39")
    a("s_mul_i32 s41, s41, 393216")
    a(f"s_add_u32 s42, s41, {256 * 393216}")
    a("s_mul_i32 s43, s39, 384")
    a("s_mul_i32 s45, s3, 12288")
    a("s_mul_i32 s47, s55, 786432")
    a("v_lshlrev_b32 v22, 4, v2")
    a("v_add_u32 v22, s45, v22")
    a("s_cmp_eq_u32 s3, 0")
    a("s_cbranch_scc0 L1_loader1")
    for L in range(2):
        sched = attn_schedule(L)
        if L == 1:
            a.label("L1_loader1")
        issued = []
        state = {"out": 0}

        def waitfor(need):
            last = max(i for i, x in enumerate(issued) if x in need)
            cnt = 12 * (len(issued) - 1 - last)
            if cnt < state["out"]:
                a(f"s_waitcnt vmcnt({cnt})")
                state["out"] = cnt

        def kvsrc(u, idx, emit, hh):
            base = "s41" if u == "A" else "s42"
            a(f"s_add_u32 s46, {base}, {idx * 12288}")
            j = 0
            if hh == 0:
                for half in range(2):
                    for jj in range(6):
                        emit(j, 10 + jj, "s[12:15]")
                        j += 1
                        a("s_add_u32 s46, s46, 6144" if jj == 5 else "s_nop 0")
            else:
                for g in range(4):
                    for jj in range(3):
                        emit(j, 16 + jj, "s[16:19]")
                        j += 1
                        a("s_add_u32 s46, s46, 3072" if jj == 2 else "s_nop 0")

        def rbase(u, t):
            return 32 + 48 * ((0 if u == "A" else 1) + 2 * (t & 1))

        def issue(ev):
            if NOLOAD:
                return
            kind = ev[0]
            if kind == "X":
                _, u, t, slot = ev
                waitfor([("R" + u, t)])
                a(f"v_add_u32 v23, {slot * SLOT}, v22")
                rb = rbase(u, t)
                for j in range(12):
                    a(f"ds_write_b128 v23, {vr(rb + 4 * j, 4)} offset:{1024 * j}")
                return
            if state["out"] + 12 > 63:
                state["out"] = 48
                a("s_waitcnt vmcnt(48)")
            state["out"] += 12
            if kind == "R":
                _, u, t = ev
                rb = rbase(u, t)
                a("s_waitcnt lgkmcnt(0)")
                kvsrc(u, t, lambda j, v, sr: a(f"buffer_load_dwordx4 {vr(rb + 4 * j, 4)}, v{v}, {sr}, s46 offen {KVPOL}"), L)
                issued.append(("R" + u, t))
                return
            _, idx, slot, hh = ev
            a(f"s_mov_b32 m0, {slot * SLOT + hh * 12288}")
            if kind == "W":
                a("s_add_u32 s46, s43, s47")
                if hh == 1:
                    a("s_add_u32 s46, s46, 393216")
                    a("s_add_u32 s47, s47, 786432")
                    a("s_cmp_eq_u32 s47, 7864320")
                    a("s_cselect_b32 s47, 0, s47")
                for g in range(4):
                    for jj in range(3):
                        a(f"buffer_load_dwordx4 v{19 + jj}, s[20:23], s46 offen lds")
                        a("s_add_u32 m0, m0, 0x400")
                        a("s_add_u32 s46, s46, 98304" if jj == 2 else "s_nop 0")
            else:
                def em(j, v, sr):
                    a(f"buffer_load_dwordx4 v{v}, {sr}, s46 offen {KVPOL} lds")
                    a("s_add_u32 m0, m0, 0x400")
                kvsrc(kind, idx, em, hh)
            issued.append((kind, idx))

        for it in sched[-1]:
            issue(it)
        for n in range(NST):
            need = [x for x in ([("W", n)] if n < NW else [(u, n - NW) for u in "AB"]) if x in issued]
            if not NOLOAD:
                if need:
                    waitfor(need)
                a("s_waitcnt lgkmcnt(0)")
            a("s_barrier")
            for it in sched[n]:
                issue(it)
        a("s_endpgm")

    QF = 16
    OA = 64
    SA = 160
    PF = 176
    AF = 184
    aWE, aWO, aVE, aVO = 10, 11, 12, 13
    aK = 232
    cE, cO = 236, 237
    cK = 238
    vM, vL, vAl, vMC, vT0, vT1, vPS, vXO, vOO = 242, 243, 244, 246, 247, 248, 249, 250, 251
    a.label("L1_compute")
    if NOCOMP:
        for i in range(NST):
            a("s_barrier")
        a("s_endpgm")
    a("v_and_b32 v3, 15, v2")
    a("v_lshrrev_b32 v4, 5, v2")
    a("v_and_b32 v5, 31, v2")
    a("v_lshrrev_b32 v6, 4, v2")
    a("v_and_b32 v6, 1, v6")
    a("v_lshrrev_b32 v7, 2, v3")
    a("v_and_b32 v8, 3, v3")
    a("v_lshlrev_b32 v8, 3, v8")
    a("v_lshl_add_u32 v8, v6, 5, v8")
    a("v_lshrrev_b32 v9, 3, v3")
    a("v_lshlrev_b32 v9, 6, v9")
    a("v_lshl_add_u32 v14, v4, 3, v7")
    a("v_mul_u32_u24 v14, 0x180, v14")
    a("v_add_u32 v14, v14, v8")
    a(f"v_add_u32 v{aWE}, v14, v9")
    a(f"v_xor_b32 v15, 64, v9")
    a(f"v_add_u32 v{aWO}, v14, v15")
    a("v_lshl_add_u32 v14, v4, 2, v7")
    a("v_mul_u32_u24 v14, 0x180, v14")
    a("v_add_u32 v14, v14, v8")
    a(f"v_add_u32 v{aVE}, v14, v9")
    a(f"v_add_u32 v{aVO}, v14, v15")
    a("v_lshrrev_b32 v14, 1, v5")
    a("v_and_b32 v14, 7, v14")
    a("v_mul_u32_u24 v15, 0x180, v5")
    for q4 in range(4):
        a(f"v_add_u32 v9, {2 * q4}, v4")
        a("v_xor_b32 v9, v9, v14")
        a(f"v_lshl_add_u32 v{aK + q4}, v9, 4, v15")
    a("s_lshl_b32 s45, s3, 3")
    a("s_add_u32 s45, s45, s38")
    a("s_mul_i32 s45, s45, 96")
    a("s_lshl_b32 s46, s40, 5")
    a("s_add_u32 s45, s45, s46")
    a("v_add_u32 v14, s45, v5")
    a("v_lshlrev_b32 v15, 4, v4")
    a(f"v_mul_u32_u24 v{vXO}, 0x500, v14")
    a(f"v_add_u32 v{vXO}, v{vXO}, v15")
    a("s_lshr_b32 s46, s45, 5")
    a("s_mul_i32 s46, s46, 384")
    a("s_mul_i32 s47, s39, 12")
    a("s_add_u32 s46, s46, s47")
    a("s_lshl_b32 s46, s46, 10")
    a(f"v_lshlrev_b32 v{vOO}, 4, v2")
    a(f"v_add_u32 v{vOO}, s46, v{vOO}")
    a(f"v_mov_b32 v{vM}, 0xff800000")
    a(f"v_mov_b32 v{vL}, 0")
    cval = (192 ** -0.5) * math.log2(math.e)
    a(f"s_mov_b32 s49, 0x{f32bits(cval):08x}")
    a("s_cmp_eq_u32 s3, 0")
    for k, sr in enumerate((47, 52, 53)):
        a(f"s_mov_b32 s{sr}, {BRING[k] * SLOT}")
        a(f"s_cselect_b32 s{sr}, {ARING[k] * SLOT}, s{sr}")

    XB = [16, 32, 48, 160]
    XD = 3

    a("s_lshl_b32 s54, s55, 7")

    def xloads(i):
        for s in range(4):
            a(f"buffer_load_dwordx4 {vr(XB[i % 4] + 4 * s, 4)}, v{vXO}, s[8:11], s54 offen offset:{32 * s}")
        a("s_add_u32 s54, s54, 128")
        a("s_cmp_eq_u32 s54, 1280")
        a("s_cselect_b32 s54, 0, s54")

    for i in range(XD):
        xloads(i)
    for i in range(NW):
        slot = (i % 4) * SLOT
        a("s_barrier")
        stamp(a)
        a(f"v_add_u32 v{cE}, {slot}, v{aWE}")
        a(f"v_add_u32 v{cO}, {slot}, v{aWO}")
        if i + XD < NW:
            xloads(i + XD)
        a(f"s_waitcnt vmcnt({4 * (min(i + XD, NW - 1) - i)})")
        items = []
        f = 0
        for s in range(4):
            for t in range(6):
                fr = AF + 4 * (f % 12)
                areg = cE if t % 2 == 0 else cO
                reads = []
                for half in range(2):
                    off = (16 * s + 4 * half) * 384 + 128 * (t >> 1)
                    reads.append(f"ds_read_b64_tr_b16 {vr(fr + 2 * half, 2)}, v{areg} offset:{off}")
                acc = vr(OA + 16 * t, 16)
                c = "0" if (i == 0 and s == 0) else acc
                m = f"v_mfma_f32_32x32x16_bf16 {acc}, {vr(fr, 4)}, {vr(XB[i % 4] + 4 * s, 4)}, {c}"
                items.append((reads, m))
                f += 1
        rolling(a, items, 6)
    stamp(a)
    a("s_nop 15")
    for t in range(6):
        for g2 in range(2):
            fq = QF + 4 * (2 * t + g2)
            src = OA + 16 * t + 8 * g2
            for k in range(4):
                a(f"v_cvt_pk_bf16_f32 v{fq + k}, v{src + 2 * k}, v{src + 2 * k + 1}")
    a("s_nop 1")
    for ks in range(12):
        fq = QF + 4 * ks
        a(f"v_permlane32_swap_b32 v{fq}, v{fq + 2}")
        a(f"v_permlane32_swap_b32 v{fq + 1}, v{fq + 3}")
    for r in range(96):
        a(f"v_mov_b32 v{OA + r}, 0")
    a("s_mov_b32 s48, 0")

    stamp(a)
    a.label("L1_kv_loop")
    a("s_barrier")
    for q4 in range(4):
        a(f"v_add_u32 v{cK + q4}, s47, v{aK + q4}")
    a(f"v_add_u32 v{cE}, s47, v{aVE}")
    a(f"v_add_u32 v{cO}, s47, v{aVO}")
    for s in range(12):
        a(f"ds_read_b128 {vr(AF + 4 * s, 4)}, v{cK + (s & 3)} offset:{128 * (s >> 2)}")
    sacc = vr(SA, 16)
    for s in range(12):
        a(f"s_waitcnt lgkmcnt({11 - s})")
        c = "0" if s == 0 else sacc
        a(f"v_mfma_f32_32x32x16_bf16 {sacc}, {vr(AF + 4 * s, 4)}, {vr(QF + 4 * s, 4)}, {c}")
    vitems = []
    for f in range(12):
        s, t = f // 6, f % 6
        fr = AF + 4 * f
        areg = cE if t % 2 == 0 else cO
        reads = []
        for half in range(2):
            off = 12288 + (16 * s + 8 * half) * 384 + 128 * (t >> 1)
            reads.append(f"ds_read_b64_tr_b16 {vr(fr + 2 * half, 2)}, v{areg} offset:{off}")
        acc = vr(OA + 16 * t, 16)
        m = f"v_mfma_f32_32x32x16_bf16 {acc}, {vr(fr, 4)}, {vr(PF + 4 * s, 4)}, {acc}"
        vitems.append((reads, m))
    for f in range(6):
        for r in vitems[f][0]:
            a(r)
    a("s_nop 3")
    a(f"v_max3_f32 v{vT0}, v{SA}, v{SA + 1}, v{SA + 2}")
    a(f"v_max3_f32 v{vT1}, v{SA + 3}, v{SA + 4}, v{SA + 5}")
    a(f"v_max3_f32 v{vT0}, v{vT0}, v{SA + 6}, v{SA + 7}")
    a(f"v_max3_f32 v{vT1}, v{vT1}, v{SA + 8}, v{SA + 9}")
    a(f"v_max3_f32 v{vT0}, v{vT0}, v{SA + 10}, v{SA + 11}")
    a(f"v_max3_f32 v{vT1}, v{vT1}, v{SA + 12}, v{SA + 13}")
    a(f"v_max3_f32 v{vT0}, v{vT0}, v{SA + 14}, v{SA + 15}")
    a(f"v_max3_f32 v{vT0}, v{vT0}, v{vT1}, v{vM}")
    a(f"v_mov_b32 v{vT1}, v{vT0}")
    a("s_nop 1")
    a(f"v_permlane32_swap_b32 v{vT0}, v{vT1}")
    a("s_nop 1")
    a(f"v_max_f32 v{vT0}, v{vT0}, v{vT1}")
    a(f"v_sub_f32 v{vT1}, v{vM}, v{vT0}")
    a(f"v_mul_f32 v{vT1}, s49, v{vT1}")
    a(f"v_exp_f32 v{vAl}, v{vT1}")
    a(f"v_mov_b32 v{vM}, v{vT0}")
    a(f"v_mul_f32 v{vMC}, s49, v{vT0}")
    a(f"v_mov_b32 v{vAl + 1}, v{vAl}")
    for r in range(16):
        a(f"v_fma_f32 v{SA + r}, v{SA + r}, s49, -v{vMC}")
    for r in range(16):
        a(f"v_exp_f32 v{SA + r}, v{SA + r}")
    for r in range(48):
        a(f"v_pk_mul_f32 {vr(OA + 2 * r, 2)}, {vr(OA + 2 * r, 2)}, {vr(vAl, 2)}")
    a(f"v_add_f32 v{vPS}, v{SA}, v{SA + 1}")
    a(f"v_add_f32 v{vT0}, v{SA + 2}, v{SA + 3}")
    for r in range(4, 16, 2):
        a(f"v_add_f32 v{vPS}, v{vPS}, v{SA + r}")
        a(f"v_add_f32 v{vT0}, v{vT0}, v{SA + r + 1}")
    a(f"v_add_f32 v{vPS}, v{vPS}, v{vT0}")
    a(f"v_fma_f32 v{vL}, v{vL}, v{vAl}, v{vPS}")
    for k in range(8):
        a(f"v_cvt_pk_bf16_f32 v{PF + k}, v{SA + 2 * k}, v{SA + 2 * k + 1}")
    a("s_nop 1")
    for f in range(12):
        if f + 6 < 12:
            for r in vitems[f + 6][0]:
                a(r)
        last = min(f + 6, 11)
        a(f"s_waitcnt lgkmcnt({2 * (last - f)})")
        a(vitems[f][1])
    a("s_mov_b32 s46, s47")
    a("s_mov_b32 s47, s52")
    a("s_mov_b32 s52, s53")
    a("s_mov_b32 s53, s46")
    a("s_add_u32 s48, s48, 1")
    a(f"s_cmp_lt_u32 s48, {NKV}")
    a("s_cbranch_scc1 L1_kv_loop")

    stamp(a)
    a(f"v_mov_b32 v{vT1}, v{vL}")
    a("s_nop 1")
    a(f"v_permlane32_swap_b32 v{vL}, v{vT1}")
    a("s_nop 1")
    a(f"v_add_f32 v{vL}, v{vL}, v{vT1}")
    a(f"v_rcp_f32 v{vAl}, v{vL}")
    a("s_nop 7")
    a(f"v_mov_b32 v{vAl + 1}, v{vAl}")
    for r in range(48):
        a(f"v_pk_mul_f32 {vr(OA + 2 * r, 2)}, {vr(OA + 2 * r, 2)}, {vr(vAl, 2)}")
    for t in range(6):
        for g2 in range(2):
            fq = QF + 4 * (2 * t + g2)
            src = OA + 16 * t + 8 * g2
            for k in range(4):
                a(f"v_cvt_pk_bf16_f32 v{fq + k}, v{src + 2 * k}, v{src + 2 * k + 1}")
    a("s_nop 1")
    for ks in range(12):
        fq = QF + 4 * ks
        a(f"v_permlane32_swap_b32 v{fq}, v{fq + 2}")
        a(f"v_permlane32_swap_b32 v{fq + 1}, v{fq + 3}")
    a("s_nop 1")
    a("s_mov_b32 s45, 4096")
    a("s_mov_b32 s46, 8192")
    for ks in range(12):
        fq = QF + 4 * ks
        so = ["0", "s45", "s46"][ks >> 2]
        a(f"buffer_store_dwordx4 {vr(fq, 4)}, v{vOO}, s[24:27], {so} offen offset:{1024 * (ks & 3)}")
    if STAMP:
        a("s_waitcnt vmcnt(0)")
        stamp(a)
        a("s_waitcnt lgkmcnt(0)")
        a(f"s_cmp_eq_u32 s2, {STAMPWG}")
        a("s_cbranch_scc0 L1_end")
        a("s_cmp_eq_u32 s40, 0")
        a("s_cbranch_scc0 L1_end")
        a("s_cmp_eq_u32 s3, 0")
        a("s_cbranch_scc0 L1_end")
        srd(a, 50, 256, 56)
        a("v_mov_b32 v1, 0")
        for k in range(_stamp_n[0]):
            a(f"s_sub_u32 s55, s{60 + 2 * k}, s60")
            a("v_mov_b32 v3, s55")
            a(f"buffer_store_dword v3, v1, s[56:59], 0 offen offset:{4 * k}")
    a.label("L1_end")
    a("s_endpgm")


K2 = "oproj_kernel"
S2 = 16384
NS2 = 8
NST2 = 24
OD2 = 7
PART_OFF = 18874368
PART_SLICE = 3932160


def gen_oproj(a):
    a.raw(f".globl {K2}")
    a.raw(".p2align 8")
    a.raw(f".type {K2},@function")
    a.label(K2)
    a("s_cmp_ge_u32 s2, 240")
    a("s_cbranch_scc1 L2_end")
    a("s_load_dwordx2 s[28:29], s[0:1], 32")
    a("s_load_dwordx2 s[30:31], s[0:1], 56")
    a("s_load_dwordx2 s[50:51], s[0:1], 48")
    a("s_load_dwordx2 s[34:35], s[0:1], 40")
    _stamp_n[0] = 0
    stamp(a, STAMP2)
    a("v_lshrrev_b32 v1, 6, v0")
    a("v_and_b32 v2, 63, v0")
    a("v_readfirstlane_b32 s40, v1")
    a("s_and_b32 s38, s2, 3")
    a("s_lshr_b32 s39, s2, 2")
    a("s_mul_i32 s41, s39, 0xcccd")
    a("s_lshr_b32 s41, s41, 18")
    a("s_mul_i32 s42, s41, 5")
    a("s_sub_u32 s42, s39, s42")
    a("s_waitcnt lgkmcnt(0)")
    srd(a, 28, 7864320, 8)
    srd(a, 30, 18874368, 12)
    a(f"s_add_u32 s32, s30, {PART_OFF}")
    a("s_addc_u32 s33, s31, 0")
    srd(a, 32, 4 * PART_SLICE, 16)
    srd(a, 50, 256, 20)
    srd(a, 34, 1966080, 24)
    a("s_cmp_ge_u32 s40, 4")
    a("s_cbranch_scc0 L2_compute")
    a("v_lshrrev_b32 v3, 4, v2")
    a("v_and_b32 v4, 15, v2")
    a("v_lshlrev_b32 v5, 2, v3")
    a("v_xor_b32 v4, v4, v5")
    a("v_lshlrev_b32 v4, 4, v4")
    a("v_mul_u32_u24 v5, 0x500, v3")
    a("v_add_u32 v10, v4, v5")
    a("s_sub_u32 s43, s40, 4")
    a("s_mul_i32 s45, s38, 1966080")
    a("s_lshl_b32 s46, s42, 8")
    a("s_add_u32 s45, s45, s46")
    a("s_mul_i32 s46, s43, 40960")
    a("s_add_u32 s45, s45, s46")
    a("s_lshl_b32 s44, s43, 13")

    def issue(i):
        a(f"s_add_u32 m0, s44, {(i % NS2) * S2}")
        a("s_nop 0")
        for jj in range(8):
            a("buffer_load_dwordx4 v10, s[8:11], s45 offen lds")
            a("s_add_u32 m0, m0, 0x400")
            a(f"s_add_u32 s45, s45, {5120 if jj < 7 else 5120 + 40960}")

    for i in range(6):
        issue(i)
    nissued = 6
    for n in range(NST2 // 2):
        a(f"s_waitcnt vmcnt({8 * (nissued - 2 * n - 2)})")
        a("s_barrier")
        for _ in range(2):
            if nissued < NST2:
                issue(nissued)
                nissued += 1
    a("s_endpgm")
    OB = [16 + 16 * i for i in range(8)]
    AC = 144
    AF = 208
    aW = 10
    vXO, vPO = 14, 15
    a.label("L2_compute")
    a("v_and_b32 v3, 15, v2")
    a("v_lshrrev_b32 v4, 5, v2")
    a("v_and_b32 v5, 31, v2")
    a("v_lshrrev_b32 v6, 4, v2")
    a("v_and_b32 v6, 1, v6")
    a("v_lshrrev_b32 v7, 2, v3")
    a("v_and_b32 v8, 3, v3")
    a("v_lshlrev_b32 v8, 3, v8")
    a("v_lshl_add_u32 v8, v6, 5, v8")
    a("v_lshl_add_u32 v9, v4, 3, v7")
    a("v_lshl_add_u32 v8, v9, 8, v8")
    for t in range(4):
        a(f"v_xor_b32 v9, {t}, v7")
        a(f"v_lshl_add_u32 v{aW + t}, v9, 6, v8")
    a("s_lshl_b32 s45, s41, 7")
    a("s_lshl_b32 s46, s40, 5")
    a("s_add_u32 s45, s45, s46")
    a("v_add_u32 v9, s45, v5")
    a("s_lshr_b32 s46, s45, 5")
    a("s_mul_i32 s46, s46, 384")
    a("s_mul_i32 s47, s38, 96")
    a("s_add_u32 s46, s46, s47")
    a("s_lshl_b32 s48, s46, 10")
    a(f"v_lshlrev_b32 v{vXO}, 4, v2")
    if FUSERED:
        a("s_lshl_b32 s47, s39, 2")
        a("s_add_u32 s47, s47, s40")
        a("s_lshl_b32 s47, s47, 16")
        a(f"v_lshlrev_b32 v{vPO}, 4, v2")
        a(f"v_add_u32 v{vPO}, s47, v{vPO}")
        a("v_mul_u32_u24 v7, 0x500, v9")
        a("v_lshl_add_u32 v7, v4, 4, v7")
        a("s_lshl_b32 s46, s42, 8")
        a("s_lshl_b32 s47, s38, 6")
        a("s_add_u32 s46, s46, s47")
        a("v_add_u32 v7, s46, v7")
    else:
        a(f"s_mul_i32 s46, s38, {PART_SLICE}")
        a("s_lshl_b32 s47, s39, 2")
        a("s_add_u32 s47, s47, s40")
        a("s_lshl_b32 s47, s47, 14")
        a("s_add_u32 s46, s46, s47")
        a(f"v_lshlrev_b32 v{vPO}, 4, v2")
        a(f"v_add_u32 v{vPO}, s46, v{vPO}")
    for t in range(4):
        a(f"v_add_u32 v{3 + t}, 0x10000, v{aW + t}")

    def oloads(i):
        for s in range(4):
            a(f"buffer_load_dwordx4 {vr(OB[i % 8] + 4 * s, 4)}, v{vXO}, s[12:15], s48 offen offset:{1024 * s}")
        a("s_add_u32 s48, s48, 4096")

    for i in range(OD2):
        oloads(i)
    fcount = 0
    for i in range(NST2):
        sl = i % NS2
        abase = aW if sl < 4 else 3
        slot = (sl % 4) * S2
        if i % 2 == 0:
            a("s_barrier")
            stamp(a, STAMP2)
        if i + OD2 < NST2:
            oloads(i + OD2)
        a(f"s_waitcnt vmcnt({4 * (min(i + OD2, NST2 - 1) - i)})")
        items = []
        for s in range(4):
            for t in range(4):
                fr = AF + 4 * (fcount % 12)
                fcount += 1
                reads = []
                for half in range(2):
                    off = slot + (16 * s + 4 * half) * 256
                    reads.append(f"ds_read_b64_tr_b16 {vr(fr + 2 * half, 2)}, v{abase + t} offset:{off}")
                acc = vr(AC + 16 * t, 16)
                c = "0" if (i == 0 and s == 0) else acc
                m = f"v_mfma_f32_32x32x16_bf16 {acc}, {vr(fr, 4)}, {vr(OB[i % 8] + 4 * s, 4)}, {c}"
                items.append((reads, m))
        rolling(a, items, 6)
    a("s_nop 15")
    if FUSERED:
        a("s_lshl_b32 s46, s38, 12")
        for t in range(4):
            a(f"s_add_u32 s45, s46, {16384 * t}")
            for q in range(4):
                a(f"buffer_store_dwordx4 {vr(AC + 16 * t + 4 * q, 4)}, v{vPO}, s[16:19], s45 offen offset:{1024 * q} sc1")
        a("s_waitcnt vmcnt(0)")
        a("s_barrier")
        a("s_cmp_eq_u32 s40, 0")
        a("s_cbranch_scc0 L2_wait")
        a("s_mov_b64 exec, 1")
        a("s_lshl_b32 s45, s39, 2")
        a("v_mov_b32 v16, s45")
        a("v_mov_b32 v17, 1")
        a("buffer_atomic_add v17, v16, s[20:23], 0 offen sc1")
        a("s_mov_b32 s46, 0")
        a.label("L2_poll")
        a("buffer_load_dword v18, v16, s[20:23], 0 offen sc1")
        a("s_waitcnt vmcnt(0)")
        a("v_readfirstlane_b32 s45, v18")
        a("s_add_u32 s46, s46, 1")
        a("s_cmp_ge_u32 s45, 4")
        a("s_cbranch_scc1 L2_polldone")
        a("s_sleep 1")
        a("s_cmp_lt_u32 s46, 0x400000")
        a("s_cbranch_scc1 L2_poll")
        a.label("L2_polldone")
        a("s_mov_b64 exec, -1")
        a.label("L2_wait")
        a("s_barrier")
        a("s_lshl_b32 s46, s38, 14")
        for src in range(4):
            a(f"s_add_u32 s45, s46, {4096 * src}")
            for q in range(4):
                a(f"buffer_load_dwordx4 {vr(16 + 16 * src + 4 * q, 4)}, v{vPO}, s[16:19], s45 offen offset:{1024 * q} sc1")
        for src in range(1, 4):
            a(f"s_waitcnt vmcnt({4 * (3 - src)})")
            for e in range(16):
                a(f"v_add_f32 v{16 + e}, v{16 + e}, v{16 + 16 * src + e}")
        for e in range(8):
            a(f"v_cvt_pk_bf16_f32 v{32 + e}, v{16 + 2 * e}, v{17 + 2 * e}")
        a("s_nop 1")
        for g2 in range(2):
            a(f"v_permlane32_swap_b32 v{32 + 4 * g2}, v{34 + 4 * g2}")
            a(f"v_permlane32_swap_b32 v{33 + 4 * g2}, v{35 + 4 * g2}")
        a("s_nop 1")
        for g2 in range(2):
            a(f"buffer_store_dwordx4 {vr(32 + 4 * g2, 4)}, v7, s[24:27], 0 offen offset:{32 * g2}")
    else:
      for t in range(4):
        a(f"s_mov_b32 s45, {4096 * t}")
        for q in range(4):
            a(f"buffer_store_dwordx4 {vr(AC + 16 * t + 4 * q, 4)}, v{vPO}, s[16:19], s45 offen offset:{1024 * q}")
    if STAMP2:
        stamp(a, STAMP2)
        a("s_waitcnt vmcnt(0)")
        stamp(a, STAMP2)
        a("s_waitcnt lgkmcnt(0)")
        a(f"s_cmp_eq_u32 s2, {STAMPWG}")
        a("s_cbranch_scc0 L2_end")
        a("s_cmp_eq_u32 s40, 0")
        a("s_cbranch_scc0 L2_end")
        srd(a, 50, 256, 56)
        a("v_mov_b32 v1, 0")
        for k in range(_stamp_n[0]):
            a(f"s_sub_u32 s55, s{60 + 2 * k}, s60")
            a("v_mov_b32 v3, s55")
            a(f"buffer_store_dword v3, v1, s[56:59], 0 offen offset:{4 * k}")
    a.label("L2_end")
    a("s_endpgm")


K3 = "reduce_kernel"


def gen_reduce(a):
    a.raw(f".globl {K3}")
    a.raw(".p2align 8")
    a.raw(f".type {K3},@function")
    a.label(K3)
    a("s_cmp_ge_u32 s2, 960")
    a("s_cbranch_scc1 L3_end")
    a("s_load_dwordx2 s[28:29], s[0:1], 40")
    a("s_load_dwordx2 s[30:31], s[0:1], 56")
    a("s_lshl_b32 s3, s2, 8")
    a("v_add_u32 v1, s3, v0")
    a("v_lshlrev_b32 v2, 4, v1")
    a("s_lshr_b32 s39, s2, 4")
    a("s_mul_i32 s41, s39, 0xcccd")
    a("s_lshr_b32 s41, s41, 18")
    a("s_mul_i32 s42, s41, 5")
    a("s_sub_u32 s42, s39, s42")
    a("s_lshr_b32 s43, s2, 2")
    a("s_and_b32 s43, s43, 3")
    a("s_and_b32 s44, s2, 3")
    a("s_lshl_b32 s45, s41, 7")
    a("s_lshl_b32 s46, s43, 5")
    a("s_add_u32 s45, s45, s46")
    a("s_lshl_b32 s46, s42, 7")
    a("s_lshl_b32 s47, s44, 5")
    a("s_add_u32 s46, s46, s47")
    a("v_and_b32 v3, 31, v0")
    a("v_add_u32 v3, s45, v3")
    a("v_mul_u32_u24 v3, 0x500, v3")
    a("v_lshrrev_b32 v4, 6, v0")
    a("v_lshlrev_b32 v4, 3, v4")
    a("v_bfe_u32 v5, v0, 5, 1")
    a("v_lshl_add_u32 v4, v5, 2, v4")
    a("v_add_u32 v4, s46, v4")
    a("v_lshl_add_u32 v3, v4, 1, v3")
    a("s_waitcnt lgkmcnt(0)")
    srd(a, 28, 1966080, 8)
    a(f"s_add_u32 s32, s30, {PART_OFF}")
    a("s_addc_u32 s33, s31, 0")
    srd(a, 32, 4 * PART_SLICE, 12)
    for k in range(1, 4):
        a(f"s_mov_b32 s{36 + k}, {k * PART_SLICE}")
    for k in range(4):
        so = "0" if k == 0 else f"s{36 + k}"
        a(f"buffer_load_dwordx4 {vr(8 + 4 * k, 4)}, v2, s[12:15], {so} offen")
    a("s_waitcnt vmcnt(2)")
    for e in range(4):
        a(f"v_add_f32 v{8 + e}, v{8 + e}, v{12 + e}")
    a("s_waitcnt vmcnt(0)")
    for e in range(4):
        a(f"v_add_f32 v{16 + e}, v{16 + e}, v{20 + e}")
    for e in range(4):
        a(f"v_add_f32 v{8 + e}, v{8 + e}, v{16 + e}")
    for e in range(2):
        a(f"v_cvt_pk_bf16_f32 v{6 + e}, v{8 + 2 * e}, v{9 + 2 * e}")
    a("buffer_store_dwordx2 v[6:7], v3, s[8:11], 0 offen")
    a.label("L3_end")
    a("s_endpgm")


def kd(name, vgpr, sgpr=102):
    acc = (vgpr + 3) // 4 * 4
    return f""".p2align 6
.amdhsa_kernel {name}
  .amdhsa_next_free_vgpr {vgpr}
  .amdhsa_next_free_sgpr {sgpr}
  .amdhsa_accum_offset {acc}
  .amdhsa_group_segment_fixed_size 0
  .amdhsa_kernarg_size 64
  .amdhsa_user_sgpr_count 2
  .amdhsa_user_sgpr_kernarg_segment_ptr 1
  .amdhsa_system_sgpr_workgroup_id_x 1
.end_amdhsa_kernel
"""


def main():
    a = Asm()
    out = HEADER
    out += f"; @launch kernel={MAIN} grid=(256,1,1) block=(512,1,1) lds={SLOT * 6}\n"
    out += f"; @launch kernel={K2} grid=(240,1,1) block=(384,1,1) lds={S2 * NS2}\n"
    if not FUSERED:
        out += f"; @launch kernel={K3} grid=(960,1,1) block=(256,1,1) lds=0\n"
    out += '.amdgcn_target "amdgcn-amd-amdhsa--gfx950"\n.text\n'
    gen_attn(a)
    gen_oproj(a)
    if not FUSERED:
        gen_reduce(a)
    out += a.text()
    out += '.section .rodata,"a"\n'
    out += kd(MAIN, 256)
    out += kd(K2, 256)
    if not FUSERED:
        out += kd(K3, 24)
    open(OUT, "w").write(out)
    print("wrote", OUT, len(out), "bytes")


if __name__ == "__main__":
    main()
```

```python
import math
import struct
import sys
import os
NOCOMP=int(os.environ.get("NOCOMP","0"))
NOLOAD=int(os.environ.get("NOLOAD","0"))
KVPOL=os.environ.get("KVPOL","nt")
NTOUCH=int(os.environ.get("NTOUCH","0"))
STAMP=int(os.environ.get("STAMP","0"))
MAP=int(os.environ.get("MAP","1"))
ROT=int(os.environ.get("ROT","1"))
STAMPWG=int(os.environ.get("STAMPWG","0"))
STAMP2=int(os.environ.get("STAMP2","0"))
FUSERED=int(os.environ.get("FUSERED","0"))
P_PART=os.environ.get("P_PART","nt")
P_RED=os.environ.get("P_RED","nt")
P_OST=os.environ.get("P_OST","")
P_WO=os.environ.get("P_WO","")
P_OLD=os.environ.get("P_OLD","nt")
P_WQ=os.environ.get("P_WQ","")
P_X=os.environ.get("P_X","")
WOPF=int(os.environ.get("WOPF","40"))

OUT = os.environ.get("OUT", "standalone__mha_block_cached__near_ridge.s")

HEADER = open("standalone__mha_block_cached__near_ridge.s.ref").read().split("; Override launch geometry")[0]

MAIN = "standalone__mha_block_cached__near_ridge_kernel"


def f32bits(x):
    return struct.unpack("<I", struct.pack("<f", x))[0]


class Asm:
    def __init__(self):
        self.lines = []

    def __call__(self, s):
        self.lines.append("    " + s)

    def label(self, l):
        self.lines.append(l + ":")

    def raw(self, s):
        self.lines.append(s)

    def text(self):
        return "\n".join(self.lines) + "\n"


def vr(a, n):
    return f"v[{a}:{a + n - 1}]"


def srd(a, base, nbytes, sreg):
    a(f"s_mov_b32 s{sreg}, s{base}")
    a(f"s_and_b32 s{sreg + 1}, s{base + 1}, 0xffff")
    a(f"s_mov_b32 s{sreg + 2}, {nbytes}")
    a(f"s_mov_b32 s{sreg + 3}, 0x00020000")


_stamp_n = [0]


def stamp(a, on=None):
    if not (STAMP if on is None else on):
        return
    k = _stamp_n[0]
    _stamp_n[0] += 1
    a(f"s_memtime s[{60 + 2 * k}:{61 + 2 * k}]")


def rolling(a, items, window, nslots_reads=None):
    n = len(items)
    nr = [len(it[0]) for it in items]
    for f in range(min(window, n)):
        for r in items[f][0]:
            a(r)
    for f in range(n):
        if f + window < n:
            for r in items[f + window][0]:
                a(r)
        last = min(f + window, n - 1)
        outstanding = sum(nr[f + 1:last + 1])
        assert outstanding <= 15
        a(f"s_waitcnt lgkmcnt({outstanding})")
        a(items[f][1])


SLOT = 24576
NW = 10
NKV = int(os.environ.get("NKV", "32"))
NST = NW + NKV
ARING = [2, 3, 0]
BRING = [4, 5, 1]
REGST = int(os.environ.get("REGST", "0"))


def attn_schedule(L):
    sched = {n: [] for n in range(-1, NST)}
    ring = {"A": ARING, "B": BRING}

    def both(n, kind, idx, slot):
        sched[n] += [(kind, idx, slot, 0), (kind, idx, slot, 1)]

    if L == 0:
        both(-1, "W", 0, 0)
        both(-1, "W", 1, 1)
        for n in range(0, 8):
            both(n, "W", n + 2, (n + 2) % 4)
        rr = {7: [("A", 3)], 8: [("B", 3), ("A", 4)], 9: [("B", 4)]}
    else:
        dma = {-1: [("B", 0), ("B", 1)], 7: [("A", 0)], 8: [("A", 1)], 9: [("A", 2)], 10: [("B", 2)]}
        for n, l in dma.items():
            for (u, t) in l:
                if t < NKV:
                    both(n, u, t, ring[u][t % 3])
        rr = {-1: [("A", 3)], 2: [("B", 3), ("A", 4), ("B", 4)]}
    RL = int(os.environ.get("RLATE", "0"))
    if RL:
        rr = {RL: [("A", 3), ("B", 3)], RL + 1: [("A", 4), ("B", 4)]}
    if REGST:
        for n, l in rr.items():
            for (u, t) in l:
                if t < NKV:
                    sched[n].append(("R", u, t))
        for t in range(1, NKV):
            if t + 2 < NKV:
                sched[NW + t] += [("X", "A", t + 2, ARING[(t + 2) % 3]), ("X", "B", t + 2, BRING[(t + 2) % 3])]
            if t + 4 < NKV:
                sched[NW + t] += [("R", "A", t + 4), ("R", "B", t + 4)]
    else:
        for t in range(1, NKV):
            if t + 2 < NKV:
                sched[NW + t].append(("A", t + 2, ARING[(t + 2) % 3], L))
                sched[NW + t].append(("B", t + 2, BRING[(t + 2) % 3], L))
    return sched


def gen_attn(a):
    a.raw(f".globl {MAIN}")
    a.raw(".p2align 8")
    a.raw(f".type {MAIN},@function")
    a.label(MAIN)
    a("s_cmp_ge_u32 s2, 256")
    a("s_cbranch_scc1 L1_end")
    a("s_load_dwordx8 s[28:35], s[0:1], 0")
    a("s_load_dwordx2 s[36:37], s[0:1], 56")
    a("s_load_dwordx2 s[50:51], s[0:1], 48")
    a("s_load_dwordx2 s[92:93], s[0:1], 32")
    stamp(a)
    a("v_lshrrev_b32 v1, 6, v0")
    a("v_and_b32 v2, 63, v0")
    a("v_readfirstlane_b32 s40, v1")
    a("s_and_b32 s39, s2, 31")
    a("s_lshr_b32 s38, s2, 5")
    a("s_lshr_b32 s3, s40, 2")
    a("s_and_b32 s40, s40, 3")
    a("s_lshr_b32 s55, s39, 3")
    a("s_mul_i32 s55, s55, 3")
    a("s_add_u32 s55, s55, s38")
    a("s_cmp_ge_u32 s55, 10")
    a("s_cselect_b32 s54, 10, 0")
    a("s_sub_u32 s55, s55, s54")
    if not ROT:
        a("s_mov_b32 s55, 0")
    a("s_waitcnt lgkmcnt(0)")
    srd(a, 28, 1966080, 8)
    srd(a, 30, 201326592, 12)
    srd(a, 32, 201326592, 16)
    srd(a, 34, 7864320, 20)
    srd(a, 36, 18874368, 24)
    srd(a, 92, 7864320, 96)
    a("s_cmp_eq_u32 s40, 3")
    a("s_cbranch_scc0 L1_compute")

    for jj in range(6):
        a(f"v_add_u32 v3, {64 * jj}, v2")
        a("v_mul_u32_u24 v4, 0xaab, v3")
        a("v_lshrrev_b32 v4, 16, v4")
        a("v_mul_u32_u24 v5, 24, v4")
        a("v_sub_u32 v5, v3, v5")
        a("v_lshrrev_b32 v6, 1, v4")
        a("v_and_b32 v7, 7, v6")
        a("v_xor_b32 v7, v7, v5")
        a("v_lshlrev_b32 v7, 4, v7")
        a("v_mul_u32_u24 v8, 0x180, v4")
        a(f"v_add_u32 v{10 + jj}, v7, v8")
        if jj < 3:
            a("v_and_b32 v7, 1, v6")
            a("v_lshlrev_b32 v7, 2, v7")
            a("v_xor_b32 v7, v7, v5")
            a("v_lshlrev_b32 v7, 4, v7")
            a(f"v_add_u32 v{16 + jj}, v7, v8")
            a("v_mul_u32_u24 v8, 0x3000, v4")
            a(f"v_add_u32 v{19 + jj}, v7, v8")
    a("s_lshl_b32 s41, s38, 5")
    a("s_add_u32 s41, s41, s39")
    a("s_mul_i32 s41, s41, 393216")
    a(f"s_add_u32 s42, s41, {256 * 393216}")
    a("s_mul_i32 s43, s39, 384")
    a("s_mul_i32 s45, s3, 12288")
    a("s_mul_i32 s47, s55, 786432")
    a("v_lshlrev_b32 v22, 4, v2")
    a("v_add_u32 v22, s45, v22")
    a("s_cmp_eq_u32 s3, 0")
    a("s_cbranch_scc0 L1_loader1")
    for L in range(2):
        sched = attn_schedule(L)
        if L == 1:
            a.label("L1_loader1")
        issued = []
        state = {"out": 0}

        def waitfor(need):
            last = max(i for i, x in enumerate(issued) if x in need)
            cnt = 12 * (len(issued) - 1 - last)
            if cnt < state["out"]:
                a(f"s_waitcnt vmcnt({cnt})")
                state["out"] = cnt

        def kvsrc(u, idx, emit, hh):
            base = "s41" if u == "A" else "s42"
            a(f"s_add_u32 s46, {base}, {idx * 12288}")
            j = 0
            if hh == 0:
                for half in range(2):
                    for jj in range(6):
                        emit(j, 10 + jj, "s[12:15]")
                        j += 1
                        a("s_add_u32 s46, s46, 6144" if jj == 5 else "s_nop 0")
            else:
                for g in range(4):
                    for jj in range(3):
                        emit(j, 16 + jj, "s[16:19]")
                        j += 1
                        a("s_add_u32 s46, s46, 3072" if jj == 2 else "s_nop 0")

        def rbase(u, t):
            return 32 + 48 * ((0 if u == "A" else 1) + 2 * (t & 1))

        def issue(ev):
            if NOLOAD:
                return
            kind = ev[0]
            if kind == "X":
                _, u, t, slot = ev
                waitfor([("R" + u, t)])
                a(f"v_add_u32 v23, {slot * SLOT}, v22")
                rb = rbase(u, t)
                for j in range(12):
                    a(f"ds_write_b128 v23, {vr(rb + 4 * j, 4)} offset:{1024 * j}")
                return
            if state["out"] + 12 > 63:
                state["out"] = 48
                a("s_waitcnt vmcnt(48)")
            state["out"] += 12
            if kind == "R":
                _, u, t = ev
                rb = rbase(u, t)
                a("s_waitcnt lgkmcnt(0)")
                kvsrc(u, t, lambda j, v, sr: a(f"buffer_load_dwordx4 {vr(rb + 4 * j, 4)}, v{v}, {sr}, s46 offen {KVPOL}"), L)
                issued.append(("R" + u, t))
                return
            _, idx, slot, hh = ev
            a(f"s_mov_b32 m0, {slot * SLOT + hh * 12288}")
            if kind == "W":
                a("s_add_u32 s46, s43, s47")
                if hh == 1:
                    a("s_add_u32 s46, s46, 393216")
                    a("s_add_u32 s47, s47, 786432")
                    a("s_cmp_eq_u32 s47, 7864320")
                    a("s_cselect_b32 s47, 0, s47")
                for g in range(4):
                    for jj in range(3):
                        a(f"buffer_load_dwordx4 v{19 + jj}, s[20:23], s46 offen {P_WQ} lds")
                        a("s_add_u32 m0, m0, 0x400")
                        a("s_add_u32 s46, s46, 98304" if jj == 2 else "s_nop 0")
            else:
                def em(j, v, sr):
                    a(f"buffer_load_dwordx4 v{v}, {sr}, s46 offen {KVPOL} lds")
                    a("s_add_u32 m0, m0, 0x400")
                kvsrc(kind, idx, em, hh)
            issued.append((kind, idx))

        for it in sched[-1]:
            issue(it)
        for n in range(NST):
            need = [x for x in ([("W", n)] if n < NW else [(u, n - NW) for u in "AB"]) if x in issued]
            if not NOLOAD:
                if need:
                    waitfor(need)
                a("s_waitcnt lgkmcnt(0)")
            a("s_barrier")
            if WOPF and L == 1 and n == WOPF:
                a("v_lshlrev_b32 v24, 7, v2")
                a("s_mul_i32 s46, s2, 30720")
                for k in range(4):
                    a(f"buffer_load_dword v{25 + k}, v24, s[96:99], s46 offen")
                    a("s_add_u32 s46, s46, 8192")
                a("s_waitcnt vmcnt(0)")
                state["out"] = 0
            for it in sched[n]:
                issue(it)
        a("s_endpgm")

    QF = 16
    OA = 64
    SA = 160
    PF = 176
    AF = 184
    aWE, aWO, aVE, aVO = 10, 11, 12, 13
    aK = 232
    cE, cO = 236, 237
    cK = 238
    vM, vL, vAl, vMC, vT0, vT1, vPS, vXO, vOO = 242, 243, 244, 246, 247, 248, 249, 250, 251
    a.label("L1_compute")
    if NOCOMP:
        for i in range(NST):
            a("s_barrier")
        a("s_endpgm")
    a("v_and_b32 v3, 15, v2")
    a("v_lshrrev_b32 v4, 5, v2")
    a("v_and_b32 v5, 31, v2")
    a("v_lshrrev_b32 v6, 4, v2")
    a("v_and_b32 v6, 1, v6")
    a("v_lshrrev_b32 v7, 2, v3")
    a("v_and_b32 v8, 3, v3")
    a("v_lshlrev_b32 v8, 3, v8")
    a("v_lshl_add_u32 v8, v6, 5, v8")
    a("v_lshrrev_b32 v9, 3, v3")
    a("v_lshlrev_b32 v9, 6, v9")
    a("v_lshl_add_u32 v14, v4, 3, v7")
    a("v_mul_u32_u24 v14, 0x180, v14")
    a("v_add_u32 v14, v14, v8")
    a(f"v_add_u32 v{aWE}, v14, v9")
    a(f"v_xor_b32 v15, 64, v9")
    a(f"v_add_u32 v{aWO}, v14, v15")
    a("v_lshl_add_u32 v14, v4, 2, v7")
    a("v_mul_u32_u24 v14, 0x180, v14")
    a("v_add_u32 v14, v14, v8")
    a(f"v_add_u32 v{aVE}, v14, v9")
    a(f"v_add_u32 v{aVO}, v14, v15")
    a("v_lshrrev_b32 v14, 1, v5")
    a("v_and_b32 v14, 7, v14")
    a("v_mul_u32_u24 v15, 0x180, v5")
    for q4 in range(4):
        a(f"v_add_u32 v9, {2 * q4}, v4")
        a("v_xor_b32 v9, v9, v14")
        a(f"v_lshl_add_u32 v{aK + q4}, v9, 4, v15")
    a("s_lshl_b32 s45, s3, 3")
    a("s_add_u32 s45, s45, s38")
    a("s_mul_i32 s45, s45, 96")
    a("s_lshl_b32 s46, s40, 5")
    a("s_add_u32 s45, s45, s46")
    a("v_add_u32 v14, s45, v5")
    a("v_lshlrev_b32 v15, 4, v4")
    a(f"v_mul_u32_u24 v{vXO}, 0x500, v14")
    a(f"v_add_u32 v{vXO}, v{vXO}, v15")
    a("s_lshr_b32 s46, s45, 5")
    a("s_mul_i32 s46, s46, 384")
    a("s_mul_i32 s47, s39, 12")
    a("s_add_u32 s46, s46, s47")
    a("s_lshl_b32 s46, s46, 10")
    a(f"v_lshlrev_b32 v{vOO}, 4, v2")
    a(f"v_add_u32 v{vOO}, s46, v{vOO}")
    a(f"v_mov_b32 v{vM}, 0xff800000")
    a(f"v_mov_b32 v{vL}, 0")
    cval = (192 ** -0.5) * math.log2(math.e)
    a(f"s_mov_b32 s49, 0x{f32bits(cval):08x}")
    a("s_cmp_eq_u32 s3, 0")
    for k, sr in enumerate((47, 52, 53)):
        a(f"s_mov_b32 s{sr}, {BRING[k] * SLOT}")
        a(f"s_cselect_b32 s{sr}, {ARING[k] * SLOT}, s{sr}")

    XB = [16, 32, 48, 160]
    XD = 3

    a("s_lshl_b32 s54, s55, 7")

    def xloads(i):
        for s in range(4):
            a(f"buffer_load_dwordx4 {vr(XB[i % 4] + 4 * s, 4)}, v{vXO}, s[8:11], s54 offen offset:{32 * s} {P_X}")
        a("s_add_u32 s54, s54, 128")
        a("s_cmp_eq_u32 s54, 1280")
        a("s_cselect_b32 s54, 0, s54")

    for i in range(XD):
        xloads(i)
    for i in range(NW):
        slot = (i % 4) * SLOT
        a("s_barrier")
        stamp(a)
        a(f"v_add_u32 v{cE}, {slot}, v{aWE}")
        a(f"v_add_u32 v{cO}, {slot}, v{aWO}")
        if i + XD < NW:
            xloads(i + XD)
        a(f"s_waitcnt vmcnt({4 * (min(i + XD, NW - 1) - i)})")
        items = []
        f = 0
        for s in range(4):
            for t in range(6):
                fr = AF + 4 * (f % 12)
                areg = cE if t % 2 == 0 else cO
                reads = []
                for half in range(2):
                    off = (16 * s + 4 * half) * 384 + 128 * (t >> 1)
                    reads.append(f"ds_read_b64_tr_b16 {vr(fr + 2 * half, 2)}, v{areg} offset:{off}")
                acc = vr(OA + 16 * t, 16)
                c = "0" if (i == 0 and s == 0) else acc
                m = f"v_mfma_f32_32x32x16_bf16 {acc}, {vr(fr, 4)}, {vr(XB[i % 4] + 4 * s, 4)}, {c}"
                items.append((reads, m))
                f += 1
        rolling(a, items, 6)
    stamp(a)
    a("s_nop 15")
    for t in range(6):
        for g2 in range(2):
            fq = QF + 4 * (2 * t + g2)
            src = OA + 16 * t + 8 * g2
            for k in range(4):
                a(f"v_cvt_pk_bf16_f32 v{fq + k}, v{src + 2 * k}, v{src + 2 * k + 1}")
    a("s_nop 1")
    for ks in range(12):
        fq = QF + 4 * ks
        a(f"v_permlane32_swap_b32 v{fq}, v{fq + 2}")
        a(f"v_permlane32_swap_b32 v{fq + 1}, v{fq + 3}")
    for r in range(96):
        a(f"v_mov_b32 v{OA + r}, 0")
    a("s_mov_b32 s48, 0")

    stamp(a)
    a.label("L1_kv_loop")
    a("s_barrier")
    for q4 in range(4):
        a(f"v_add_u32 v{cK + q4}, s47, v{aK + q4}")
    a(f"v_add_u32 v{cE}, s47, v{aVE}")
    a(f"v_add_u32 v{cO}, s47, v{aVO}")
    for s in range(12):
        a(f"ds_read_b128 {vr(AF + 4 * s, 4)}, v{cK + (s & 3)} offset:{128 * (s >> 2)}")
    sacc = vr(SA, 16)
    for s in range(12):
        a(f"s_waitcnt lgkmcnt({11 - s})")
        c = "0" if s == 0 else sacc
        a(f"v_mfma_f32_32x32x16_bf16 {sacc}, {vr(AF + 4 * s, 4)}, {vr(QF + 4 * s, 4)}, {c}")
    vitems = []
    for f in range(12):
        s, t = f // 6, f % 6
        fr = AF + 4 * f
        areg = cE if t % 2 == 0 else cO
        reads = []
        for half in range(2):
            off = 12288 + (16 * s + 8 * half) * 384 + 128 * (t >> 1)
            reads.append(f"ds_read_b64_tr_b16 {vr(fr + 2 * half, 2)}, v{areg} offset:{off}")
        acc = vr(OA + 16 * t, 16)
        m = f"v_mfma_f32_32x32x16_bf16 {acc}, {vr(fr, 4)}, {vr(PF + 4 * s, 4)}, {acc}"
        vitems.append((reads, m))
    for f in range(6):
        for r in vitems[f][0]:
            a(r)
    a("s_nop 3")
    a(f"v_max3_f32 v{vT0}, v{SA}, v{SA + 1}, v{SA + 2}")
    a(f"v_max3_f32 v{vT1}, v{SA + 3}, v{SA + 4}, v{SA + 5}")
    a(f"v_max3_f32 v{vT0}, v{vT0}, v{SA + 6}, v{SA + 7}")
    a(f"v_max3_f32 v{vT1}, v{vT1}, v{SA + 8}, v{SA + 9}")
    a(f"v_max3_f32 v{vT0}, v{vT0}, v{SA + 10}, v{SA + 11}")
    a(f"v_max3_f32 v{vT1}, v{vT1}, v{SA + 12}, v{SA + 13}")
    a(f"v_max3_f32 v{vT0}, v{vT0}, v{SA + 14}, v{SA + 15}")
    a(f"v_max3_f32 v{vT0}, v{vT0}, v{vT1}, v{vM}")
    a(f"v_mov_b32 v{vT1}, v{vT0}")
    a("s_nop 1")
    a(f"v_permlane32_swap_b32 v{vT0}, v{vT1}")
    a("s_nop 1")
    a(f"v_max_f32 v{vT0}, v{vT0}, v{vT1}")
    a(f"v_sub_f32 v{vT1}, v{vM}, v{vT0}")
    a(f"v_mul_f32 v{vT1}, s49, v{vT1}")
    a(f"v_exp_f32 v{vAl}, v{vT1}")
    a(f"v_mov_b32 v{vM}, v{vT0}")
    a(f"v_mul_f32 v{vMC}, s49, v{vT0}")
    a(f"v_mov_b32 v{vAl + 1}, v{vAl}")
    for r in range(16):
        a(f"v_fma_f32 v{SA + r}, v{SA + r}, s49, -v{vMC}")
    for r in range(16):
        a(f"v_exp_f32 v{SA + r}, v{SA + r}")
    for r in range(48):
        a(f"v_pk_mul_f32 {vr(OA + 2 * r, 2)}, {vr(OA + 2 * r, 2)}, {vr(vAl, 2)}")
    a(f"v_add_f32 v{vPS}, v{SA}, v{SA + 1}")
    a(f"v_add_f32 v{vT0}, v{SA + 2}, v{SA + 3}")
    for r in range(4, 16, 2):
        a(f"v_add_f32 v{vPS}, v{vPS}, v{SA + r}")
        a(f"v_add_f32 v{vT0}, v{vT0}, v{SA + r + 1}")
    a(f"v_add_f32 v{vPS}, v{vPS}, v{vT0}")
    a(f"v_fma_f32 v{vL}, v{vL}, v{vAl}, v{vPS}")
    for k in range(8):
        a(f"v_cvt_pk_bf16_f32 v{PF + k}, v{SA + 2 * k}, v{SA + 2 * k + 1}")
    a("s_nop 1")
    for f in range(12):
        if f + 6 < 12:
            for r in vitems[f + 6][0]:
                a(r)
        last = min(f + 6, 11)
        a(f"s_waitcnt lgkmcnt({2 * (last - f)})")
        a(vitems[f][1])
    a("s_mov_b32 s46, s47")
    a("s_mov_b32 s47, s52")
    a("s_mov_b32 s52, s53")
    a("s_mov_b32 s53, s46")
    a("s_add_u32 s48, s48, 1")
    a(f"s_cmp_lt_u32 s48, {NKV}")
    a("s_cbranch_scc1 L1_kv_loop")

    stamp(a)
    a(f"v_mov_b32 v{vT1}, v{vL}")
    a("s_nop 1")
    a(f"v_permlane32_swap_b32 v{vL}, v{vT1}")
    a("s_nop 1")
    a(f"v_add_f32 v{vL}, v{vL}, v{vT1}")
    a(f"v_rcp_f32 v{vAl}, v{vL}")
    a("s_nop 7")
    a(f"v_mov_b32 v{vAl + 1}, v{vAl}")
    for r in range(48):
        a(f"v_pk_mul_f32 {vr(OA + 2 * r, 2)}, {vr(OA + 2 * r, 2)}, {vr(vAl, 2)}")
    for t in range(6):
        for g2 in range(2):
            fq = QF + 4 * (2 * t + g2)
            src = OA + 16 * t + 8 * g2
            for k in range(4):
                a(f"v_cvt_pk_bf16_f32 v{fq + k}, v{src + 2 * k}, v{src + 2 * k + 1}")
    a("s_nop 1")
    for ks in range(12):
        fq = QF + 4 * ks
        a(f"v_permlane32_swap_b32 v{fq}, v{fq + 2}")
        a(f"v_permlane32_swap_b32 v{fq + 1}, v{fq + 3}")
    a("s_nop 1")
    a("s_mov_b32 s45, 4096")
    a("s_mov_b32 s46, 8192")
    for ks in range(12):
        fq = QF + 4 * ks
        so = ["0", "s45", "s46"][ks >> 2]
        a(f"buffer_store_dwordx4 {vr(fq, 4)}, v{vOO}, s[24:27], {so} offen offset:{1024 * (ks & 3)} {P_OST}")
    if STAMP:
        a("s_waitcnt vmcnt(0)")
        stamp(a)
        a("s_waitcnt lgkmcnt(0)")
        a(f"s_cmp_eq_u32 s2, {STAMPWG}")
        a("s_cbranch_scc0 L1_end")
        a("s_cmp_eq_u32 s40, 0")
        a("s_cbranch_scc0 L1_end")
        a("s_cmp_eq_u32 s3, 0")
        a("s_cbranch_scc0 L1_end")
        srd(a, 50, 256, 56)
        a("v_mov_b32 v1, 0")
        for k in range(_stamp_n[0]):
            a(f"s_sub_u32 s55, s{60 + 2 * k}, s60")
            a("v_mov_b32 v3, s55")
            a(f"buffer_store_dword v3, v1, s[56:59], 0 offen offset:{4 * k}")
    a.label("L1_end")
    a("s_endpgm")


K2 = "oproj_kernel"
S2 = 16384
NS2 = 8
NST2 = 24
OD2 = 7
PART_OFF = 18874368
PART_SLICE = 3932160


def gen_oproj(a):
    a.raw(f".globl {K2}")
    a.raw(".p2align 8")
    a.raw(f".type {K2},@function")
    a.label(K2)
    a("s_cmp_ge_u32 s2, 240")
    a("s_cbranch_scc1 L2_end")
    a("s_load_dwordx2 s[28:29], s[0:1], 32")
    a("s_load_dwordx2 s[30:31], s[0:1], 56")
    a("s_load_dwordx2 s[50:51], s[0:1], 48")
    a("s_load_dwordx2 s[34:35], s[0:1], 40")
    _stamp_n[0] = 0
    stamp(a, STAMP2)
    a("v_lshrrev_b32 v1, 6, v0")
    a("v_and_b32 v2, 63, v0")
    a("v_readfirstlane_b32 s40, v1")
    a("s_and_b32 s38, s2, 3")
    a("s_lshr_b32 s39, s2, 3")
    a("s_bfe_u32 s41, s2, 0x10002")
    a("s_mul_i32 s41, s41, 30")
    a("s_add_u32 s39, s39, s41")
    a("s_mul_i32 s41, s39, 0xcccd")
    a("s_lshr_b32 s41, s41, 18")
    a("s_mul_i32 s42, s41, 5")
    a("s_sub_u32 s42, s39, s42")
    a("s_waitcnt lgkmcnt(0)")
    srd(a, 28, 7864320, 8)
    srd(a, 30, 18874368, 12)
    a(f"s_add_u32 s32, s30, {PART_OFF}")
    a("s_addc_u32 s33, s31, 0")
    srd(a, 32, 4 * PART_SLICE, 16)
    srd(a, 50, 256, 20)
    srd(a, 34, 1966080, 24)
    a("s_cmp_ge_u32 s40, 4")
    a("s_cbranch_scc0 L2_compute")
    a("v_lshrrev_b32 v3, 4, v2")
    a("v_and_b32 v4, 15, v2")
    a("v_lshlrev_b32 v5, 2, v3")
    a("v_xor_b32 v4, v4, v5")
    a("v_lshlrev_b32 v4, 4, v4")
    a("v_mul_u32_u24 v5, 0x500, v3")
    a("v_add_u32 v10, v4, v5")
    a("s_sub_u32 s43, s40, 4")
    a("s_mul_i32 s45, s38, 1966080")
    a("s_lshl_b32 s46, s42, 8")
    a("s_add_u32 s45, s45, s46")
    a("s_mul_i32 s46, s43, 40960")
    a("s_add_u32 s45, s45, s46")
    a("s_lshl_b32 s44, s43, 13")

    def issue(i):
        a(f"s_add_u32 m0, s44, {(i % NS2) * S2}")
        a("s_nop 0")
        for jj in range(8):
            a(f"buffer_load_dwordx4 v10, s[8:11], s45 offen {P_WO} lds")
            a("s_add_u32 m0, m0, 0x400")
            a(f"s_add_u32 s45, s45, {5120 if jj < 7 else 5120 + 40960}")

    for i in range(6):
        issue(i)
    nissued = 6
    for n in range(NST2 // 2):
        a(f"s_waitcnt vmcnt({8 * (nissued - 2 * n - 2)})")
        a("s_barrier")
        for _ in range(2):
            if nissued < NST2:
                issue(nissued)
                nissued += 1
    a("s_endpgm")
    OB = [16 + 16 * i for i in range(8)]
    AC = 144
    AF = 208
    aW = 10
    vXO, vPO = 14, 15
    a.label("L2_compute")
    a("v_and_b32 v3, 15, v2")
    a("v_lshrrev_b32 v4, 5, v2")
    a("v_and_b32 v5, 31, v2")
    a("v_lshrrev_b32 v6, 4, v2")
    a("v_and_b32 v6, 1, v6")
    a("v_lshrrev_b32 v7, 2, v3")
    a("v_and_b32 v8, 3, v3")
    a("v_lshlrev_b32 v8, 3, v8")
    a("v_lshl_add_u32 v8, v6, 5, v8")
    a("v_lshl_add_u32 v9, v4, 3, v7")
    a("v_lshl_add_u32 v8, v9, 8, v8")
    for t in range(4):
        a(f"v_xor_b32 v9, {t}, v7")
        a(f"v_lshl_add_u32 v{aW + t}, v9, 6, v8")
    a("s_lshl_b32 s45, s41, 7")
    a("s_lshl_b32 s46, s40, 5")
    a("s_add_u32 s45, s45, s46")
    a("v_add_u32 v9, s45, v5")
    a("s_lshr_b32 s46, s45, 5")
    a("s_mul_i32 s46, s46, 384")
    a("s_mul_i32 s47, s38, 96")
    a("s_add_u32 s46, s46, s47")
    a("s_lshl_b32 s48, s46, 10")
    a(f"v_lshlrev_b32 v{vXO}, 4, v2")
    if FUSERED:
        a("s_lshl_b32 s47, s39, 2")
        a("s_add_u32 s47, s47, s40")
        a("s_lshl_b32 s47, s47, 16")
        a(f"v_lshlrev_b32 v{vPO}, 4, v2")
        a(f"v_add_u32 v{vPO}, s47, v{vPO}")
        a("v_mul_u32_u24 v7, 0x500, v9")
        a("v_lshl_add_u32 v7, v4, 4, v7")
        a("s_lshl_b32 s46, s42, 8")
        a("s_lshl_b32 s47, s38, 6")
        a("s_add_u32 s46, s46, s47")
        a("v_add_u32 v7, s46, v7")
    else:
        a(f"s_mul_i32 s46, s38, {PART_SLICE}")
        a("s_lshl_b32 s47, s39, 2")
        a("s_add_u32 s47, s47, s40")
        a("s_lshl_b32 s47, s47, 14")
        a("s_add_u32 s46, s46, s47")
        a(f"v_lshlrev_b32 v{vPO}, 4, v2")
        a(f"v_add_u32 v{vPO}, s46, v{vPO}")
    for t in range(4):
        a(f"v_add_u32 v{3 + t}, 0x10000, v{aW + t}")

    def oloads(i):
        for s in range(4):
            a(f"buffer_load_dwordx4 {vr(OB[i % 8] + 4 * s, 4)}, v{vXO}, s[12:15], s48 offen offset:{1024 * s} {P_OLD}")
        a("s_add_u32 s48, s48, 4096")

    for i in range(OD2):
        oloads(i)
    fcount = 0
    for i in range(NST2):
        sl = i % NS2
        abase = aW if sl < 4 else 3
        slot = (sl % 4) * S2
        if i % 2 == 0:
            a("s_barrier")
            stamp(a, STAMP2)
        if i + OD2 < NST2:
            oloads(i + OD2)
        a(f"s_waitcnt vmcnt({4 * (min(i + OD2, NST2 - 1) - i)})")
        items = []
        for s in range(4):
            for t in range(4):
                fr = AF + 4 * (fcount % 12)
                fcount += 1
                reads = []
                for half in range(2):
                    off = slot + (16 * s + 4 * half) * 256
                    reads.append(f"ds_read_b64_tr_b16 {vr(fr + 2 * half, 2)}, v{abase + t} offset:{off}")
                acc = vr(AC + 16 * t, 16)
                c = "0" if (i == 0 and s == 0) else acc
                m = f"v_mfma_f32_32x32x16_bf16 {acc}, {vr(fr, 4)}, {vr(OB[i % 8] + 4 * s, 4)}, {c}"
                items.append((reads, m))
        rolling(a, items, 6)
    a("s_nop 15")
    if FUSERED:
        a("s_lshl_b32 s46, s38, 12")
        for t in range(4):
            a(f"s_add_u32 s45, s46, {16384 * t}")
            for q in range(4):
                a(f"buffer_store_dwordx4 {vr(AC + 16 * t + 4 * q, 4)}, v{vPO}, s[16:19], s45 offen offset:{1024 * q} sc1")
        a("s_waitcnt vmcnt(0)")
        a("s_barrier")
        a("s_cmp_eq_u32 s40, 0")
        a("s_cbranch_scc0 L2_wait")
        a("s_mov_b64 exec, 1")
        a("s_lshl_b32 s45, s39, 2")
        a("v_mov_b32 v16, s45")
        a("v_mov_b32 v17, 1")
        a("buffer_atomic_add v17, v16, s[20:23], 0 offen sc1")
        a("s_mov_b32 s46, 0")
        a.label("L2_poll")
        a("buffer_load_dword v18, v16, s[20:23], 0 offen sc1")
        a("s_waitcnt vmcnt(0)")
        a("v_readfirstlane_b32 s45, v18")
        a("s_add_u32 s46, s46, 1")
        a("s_cmp_ge_u32 s45, 4")
        a("s_cbranch_scc1 L2_polldone")
        a("s_sleep 1")
        a("s_cmp_lt_u32 s46, 0x400000")
        a("s_cbranch_scc1 L2_poll")
        a.label("L2_polldone")
        a("s_mov_b64 exec, -1")
        a.label("L2_wait")
        a("s_barrier")
        a("s_lshl_b32 s46, s38, 14")
        for src in range(4):
            a(f"s_add_u32 s45, s46, {4096 * src}")
            for q in range(4):
                a(f"buffer_load_dwordx4 {vr(16 + 16 * src + 4 * q, 4)}, v{vPO}, s[16:19], s45 offen offset:{1024 * q} sc1")
        for src in range(1, 4):
            a(f"s_waitcnt vmcnt({4 * (3 - src)})")
            for e in range(16):
                a(f"v_add_f32 v{16 + e}, v{16 + e}, v{16 + 16 * src + e}")
        for e in range(8):
            a(f"v_cvt_pk_bf16_f32 v{32 + e}, v{16 + 2 * e}, v{17 + 2 * e}")
        a("s_nop 1")
        for g2 in range(2):
            a(f"v_permlane32_swap_b32 v{32 + 4 * g2}, v{34 + 4 * g2}")
            a(f"v_permlane32_swap_b32 v{33 + 4 * g2}, v{35 + 4 * g2}")
        a("s_nop 1")
        for g2 in range(2):
            a(f"buffer_store_dwordx4 {vr(32 + 4 * g2, 4)}, v7, s[24:27], 0 offen offset:{32 * g2}")
    else:
      for t in range(4):
        a(f"s_mov_b32 s45, {4096 * t}")
        for q in range(4):
            a(f"buffer_store_dwordx4 {vr(AC + 16 * t + 4 * q, 4)}, v{vPO}, s[16:19], s45 offen offset:{1024 * q} {P_PART}")
    if STAMP2:
        stamp(a, STAMP2)
        a("s_waitcnt vmcnt(0)")
        stamp(a, STAMP2)
        a("s_waitcnt lgkmcnt(0)")
        a(f"s_cmp_eq_u32 s2, {STAMPWG}")
        a("s_cbranch_scc0 L2_end")
        a("s_cmp_eq_u32 s40, 0")
        a("s_cbranch_scc0 L2_end")
        srd(a, 50, 256, 56)
        a("v_mov_b32 v1, 0")
        for k in range(_stamp_n[0]):
            a(f"s_sub_u32 s55, s{60 + 2 * k}, s60")
            a("v_mov_b32 v3, s55")
            a(f"buffer_store_dword v3, v1, s[56:59], 0 offen offset:{4 * k}")
    a.label("L2_end")
    a("s_endpgm")


K3 = "reduce_kernel"


def gen_reduce(a):
    a.raw(f".globl {K3}")
    a.raw(".p2align 8")
    a.raw(f".type {K3},@function")
    a.label(K3)
    a("s_cmp_ge_u32 s2, 960")
    a("s_cbranch_scc1 L3_end")
    a("s_load_dwordx2 s[28:29], s[0:1], 40")
    a("s_load_dwordx2 s[30:31], s[0:1], 56")
    a("s_lshl_b32 s3, s2, 8")
    a("v_add_u32 v1, s3, v0")
    a("v_lshlrev_b32 v2, 4, v1")
    a("s_lshr_b32 s39, s2, 4")
    a("s_mul_i32 s41, s39, 0xcccd")
    a("s_lshr_b32 s41, s41, 18")
    a("s_mul_i32 s42, s41, 5")
    a("s_sub_u32 s42, s39, s42")
    a("s_lshr_b32 s43, s2, 2")
    a("s_and_b32 s43, s43, 3")
    a("s_and_b32 s44, s2, 3")
    a("s_lshl_b32 s45, s41, 7")
    a("s_lshl_b32 s46, s43, 5")
    a("s_add_u32 s45, s45, s46")
    a("s_lshl_b32 s46, s42, 7")
    a("s_lshl_b32 s47, s44, 5")
    a("s_add_u32 s46, s46, s47")
    a("v_and_b32 v3, 31, v0")
    a("v_add_u32 v3, s45, v3")
    a("v_mul_u32_u24 v3, 0x500, v3")
    a("v_lshrrev_b32 v4, 6, v0")
    a("v_lshlrev_b32 v4, 3, v4")
    a("v_bfe_u32 v5, v0, 5, 1")
    a("v_lshl_add_u32 v4, v5, 2, v4")
    a("v_add_u32 v4, s46, v4")
    a("v_lshl_add_u32 v3, v4, 1, v3")
    a("s_waitcnt lgkmcnt(0)")
    srd(a, 28, 1966080, 8)
    a(f"s_add_u32 s32, s30, {PART_OFF}")
    a("s_addc_u32 s33, s31, 0")
    srd(a, 32, 4 * PART_SLICE, 12)
    for k in range(1, 4):
        a(f"s_mov_b32 s{36 + k}, {k * PART_SLICE}")
    for k in range(4):
        so = "0" if k == 0 else f"s{36 + k}"
        a(f"buffer_load_dwordx4 {vr(8 + 4 * k, 4)}, v2, s[12:15], {so} offen {P_RED}")
    a("s_waitcnt vmcnt(2)")
    for e in range(4):
        a(f"v_add_f32 v{8 + e}, v{8 + e}, v{12 + e}")
    a("s_waitcnt vmcnt(0)")
    for e in range(4):
        a(f"v_add_f32 v{16 + e}, v{16 + e}, v{20 + e}")
    for e in range(4):
        a(f"v_add_f32 v{8 + e}, v{8 + e}, v{16 + e}")
    for e in range(2):
        a(f"v_cvt_pk_bf16_f32 v{6 + e}, v{8 + 2 * e}, v{9 + 2 * e}")
    a("buffer_store_dwordx2 v[6:7], v3, s[8:11], 0 offen")
    a.label("L3_end")
    a("s_endpgm")


def kd(name, vgpr, sgpr=102):
    acc = (vgpr + 3) // 4 * 4
    return f""".p2align 6
.amdhsa_kernel {name}
  .amdhsa_next_free_vgpr {vgpr}
  .amdhsa_next_free_sgpr {sgpr}
  .amdhsa_accum_offset {acc}
  .amdhsa_group_segment_fixed_size 0
  .amdhsa_kernarg_size 64
  .amdhsa_user_sgpr_count 2
  .amdhsa_user_sgpr_kernarg_segment_ptr 1
  .amdhsa_system_sgpr_workgroup_id_x 1
.end_amdhsa_kernel
"""


def main():
    a = Asm()
    out = HEADER
    out += f"; @launch kernel={MAIN} grid=(256,1,1) block=(512,1,1) lds={SLOT * 6}\n"
    out += f"; @launch kernel={K2} grid=(240,1,1) block=(384,1,1) lds={S2 * NS2}\n"
    if not FUSERED:
        out += f"; @launch kernel={K3} grid=(960,1,1) block=(256,1,1) lds=0\n"
    out += '.amdgcn_target "amdgcn-amd-amdhsa--gfx950"\n.text\n'
    gen_attn(a)
    gen_oproj(a)
    if not FUSERED:
        gen_reduce(a)
    out += a.text()
    out += '.section .rodata,"a"\n'
    out += kd(MAIN, 256)
    out += kd(K2, 256)
    if not FUSERED:
        out += kd(K3, 24)
    open(OUT, "w").write(out)
    print("wrote", OUT, len(out), "bytes")


if __name__ == "__main__":
    main()
```

```python
import math
import struct
import sys
import os
NOCOMP=int(os.environ.get("NOCOMP","0"))
NOLOAD=int(os.environ.get("NOLOAD","0"))
KVPOL=os.environ.get("KVPOL","nt")
NTOUCH=int(os.environ.get("NTOUCH","0"))
STAMP=int(os.environ.get("STAMP","0"))
MAP=int(os.environ.get("MAP","1"))
ROT=int(os.environ.get("ROT","1"))
STAMPWG=int(os.environ.get("STAMPWG","0"))
STAMP2=int(os.environ.get("STAMP2","0"))
FUSERED=int(os.environ.get("FUSERED","0"))
P_PART=os.environ.get("P_PART","nt")
P_RED=os.environ.get("P_RED","nt")
P_OST=os.environ.get("P_OST","")
P_WO=os.environ.get("P_WO","")
P_OLD=os.environ.get("P_OLD","nt")
P_WQ=os.environ.get("P_WQ","")
P_X=os.environ.get("P_X","")
WOPF=int(os.environ.get("WOPF","-2"))
STAG=int(os.environ.get("STAG","0"))
APF=int(os.environ.get("APF","4"))

OUT = os.environ.get("OUT", "standalone__mha_block_cached__near_ridge.s")

HEADER = open("standalone__mha_block_cached__near_ridge.s.ref").read().split("; Override launch geometry")[0]

MAIN = "standalone__mha_block_cached__near_ridge_kernel"


def f32bits(x):
    return struct.unpack("<I", struct.pack("<f", x))[0]


class Asm:
    def __init__(self):
        self.lines = []

    def __call__(self, s):
        self.lines.append("    " + s)

    def label(self, l):
        self.lines.append(l + ":")

    def raw(self, s):
        self.lines.append(s)

    def text(self):
        return "\n".join(self.lines) + "\n"


def vr(a, n):
    return f"v[{a}:{a + n - 1}]"


def srd(a, base, nbytes, sreg):
    a(f"s_mov_b32 s{sreg}, s{base}")
    a(f"s_and_b32 s{sreg + 1}, s{base + 1}, 0xffff")
    a(f"s_mov_b32 s{sreg + 2}, {nbytes}")
    a(f"s_mov_b32 s{sreg + 3}, 0x00020000")


_stamp_n = [0]


def stamp(a, on=None):
    if not (STAMP if on is None else on):
        return
    k = _stamp_n[0]
    _stamp_n[0] += 1
    a(f"s_memtime s[{60 + 2 * k}:{61 + 2 * k}]")


def rolling(a, items, window, nslots_reads=None):
    n = len(items)
    nr = [len(it[0]) for it in items]
    for f in range(min(window, n)):
        for r in items[f][0]:
            a(r)
    for f in range(n):
        if f + window < n:
            for r in items[f + window][0]:
                a(r)
        last = min(f + window, n - 1)
        outstanding = sum(nr[f + 1:last + 1])
        assert outstanding <= 15
        a(f"s_waitcnt lgkmcnt({outstanding})")
        a(items[f][1])


SLOT = 24576
NW = 10
NKV = int(os.environ.get("NKV", "32"))
NST = NW + NKV
REGST = 0
if STAG:
    ARING = [3, 4, 5]
    BRING = [2, 0, 1]
    NSTEP = NST + NW
else:
    ARING = [2, 3, 0]
    BRING = [4, 5, 1]
    NSTEP = NST


def attn_schedule(L):
    sched = {n: [] for n in range(-1, NSTEP)}
    ring = {"A": ARING, "B": BRING}

    def both(n, kind, idx, slot):
        sched[n] += [(kind, idx, slot, 0), (kind, idx, slot, 1)]

    if not STAG:
        if L == 0:
            both(-1, "W", 0, 0)
            both(-1, "W", 1, 1)
            for n in range(0, 8):
                both(n, "W", n + 2, (n + 2) % 4)
        else:
            BPF = int(os.environ.get("BPF", "5"))
            dma = {7: [("A", 0)], 8: [("A", 1)], 9: [("A", 2)], 10: [("B", 2)]}
            if BPF < 0:
                dma[-1] = [("B", 0), ("B", 1)]
            else:
                dma[BPF] = [("B", 0)]
                dma[BPF + 1] = [("B", 1)]
            for n, l in dma.items():
                for (u, t) in l:
                    if t < NKV:
                        both(n, u, t, ring[u][t % 3])
        for t in range(1, NKV):
            if t + 2 < NKV:
                sched[NW + t].append(("A", t + 2, ARING[(t + 2) % 3], L))
                sched[NW + t].append(("B", t + 2, BRING[(t + 2) % 3], L))
        return sched
    if L == 0:
        both(-1, "W", 0, 0)
        both(-1, "W", 1, 1)
        for n in range(0, 2 * NW - 2):
            both(n, "W", n + 2, (n + 2) % 3)
    else:
        for t in range(3):
            both(APF + t, "A", t, ARING[t])
            both(2 * NW - 2 + t, "B", t, BRING[t])
    for t in range(1, NKV - 2):
        n = NW + t
        if n < 2 * NW:
            if L == 1:
                both(n, "A", t + 2, ARING[(t + 2) % 3])
        else:
            sched[n].append(("A", t + 2, ARING[(t + 2) % 3], L))
        sched[2 * NW + t].append(("B", t + 2, BRING[(t + 2) % 3], L))
    return sched


def step_needs(n):
    if not STAG:
        return [("W", n)] if n < NW else [("A", n - NW), ("B", n - NW)]
    need = []
    if n < 2 * NW:
        need.append(("W", n))
    if NW <= n < NW + NKV:
        need.append(("A", n - NW))
    if n >= 2 * NW:
        need.append(("B", n - 2 * NW))
    return need


def gen_attn(a):
    a.raw(f".globl {MAIN}")
    a.raw(".p2align 8")
    a.raw(f".type {MAIN},@function")
    a.label(MAIN)
    a("s_cmp_ge_u32 s2, 256")
    a("s_cbranch_scc1 L1_end")
    a("s_load_dwordx8 s[28:35], s[0:1], 0")
    a("s_load_dwordx2 s[36:37], s[0:1], 56")
    a("s_load_dwordx2 s[50:51], s[0:1], 48")
    a("s_load_dwordx2 s[92:93], s[0:1], 32")
    stamp(a)
    a("v_lshrrev_b32 v1, 6, v0")
    a("v_and_b32 v2, 63, v0")
    a("v_readfirstlane_b32 s40, v1")
    a("s_and_b32 s39, s2, 31")
    a("s_lshr_b32 s38, s2, 5")
    a("s_lshr_b32 s3, s40, 2")
    a("s_and_b32 s40, s40, 3")
    a("s_lshr_b32 s55, s39, 3")
    a("s_mul_i32 s55, s55, 3")
    a("s_add_u32 s55, s55, s38")
    a("s_cmp_ge_u32 s55, 10")
    a("s_cselect_b32 s54, 10, 0")
    a("s_sub_u32 s55, s55, s54")
    if not ROT:
        a("s_mov_b32 s55, 0")
    a("s_waitcnt lgkmcnt(0)")
    srd(a, 28, 1966080, 8)
    srd(a, 30, 201326592, 12)
    srd(a, 32, 201326592, 16)
    srd(a, 34, 7864320, 20)
    srd(a, 36, 18874368, 24)
    srd(a, 92, 7864320, 96)
    a("s_cmp_eq_u32 s40, 3")
    a("s_cbranch_scc0 L1_compute")

    for jj in range(6):
        a(f"v_add_u32 v3, {64 * jj}, v2")
        a("v_mul_u32_u24 v4, 0xaab, v3")
        a("v_lshrrev_b32 v4, 16, v4")
        a("v_mul_u32_u24 v5, 24, v4")
        a("v_sub_u32 v5, v3, v5")
        a("v_lshrrev_b32 v6, 1, v4")
        a("v_and_b32 v7, 7, v6")
        a("v_xor_b32 v7, v7, v5")
        a("v_lshlrev_b32 v7, 4, v7")
        a("v_mul_u32_u24 v8, 0x180, v4")
        a(f"v_add_u32 v{10 + jj}, v7, v8")
        if jj < 3:
            a("v_and_b32 v7, 1, v6")
            a("v_lshlrev_b32 v7, 2, v7")
            a("v_xor_b32 v7, v7, v5")
            a("v_lshlrev_b32 v7, 4, v7")
            a(f"v_add_u32 v{16 + jj}, v7, v8")
            a("v_mul_u32_u24 v8, 0x3000, v4")
            a(f"v_add_u32 v{19 + jj}, v7, v8")
    a("s_lshl_b32 s41, s38, 5")
    a("s_add_u32 s41, s41, s39")
    a("s_mul_i32 s41, s41, 393216")
    a(f"s_add_u32 s42, s41, {256 * 393216}")
    a("s_mul_i32 s43, s39, 384")
    a("s_mul_i32 s45, s3, 12288")
    a("s_mul_i32 s47, s55, 786432")
    a("v_lshlrev_b32 v22, 4, v2")
    a("v_add_u32 v22, s45, v22")
    a("s_cmp_eq_u32 s3, 0")
    a("s_cbranch_scc0 L1_loader1")
    for L in range(2):
        sched = attn_schedule(L)
        if L == 1:
            a.label("L1_loader1")
        issued = []
        state = {"out": 0}

        def waitfor(need):
            last = max(i for i, x in enumerate(issued) if x in need)
            cnt = 12 * (len(issued) - 1 - last)
            if cnt < state["out"]:
                a(f"s_waitcnt vmcnt({cnt})")
                state["out"] = cnt

        def kvsrc(u, idx, emit, hh):
            base = "s41" if u == "A" else "s42"
            a(f"s_add_u32 s46, {base}, {idx * 12288}")
            j = 0
            if hh == 0:
                for half in range(2):
                    for jj in range(6):
                        emit(j, 10 + jj, "s[12:15]")
                        j += 1
                        a("s_add_u32 s46, s46, 6144" if jj == 5 else "s_nop 0")
            else:
                for g in range(4):
                    for jj in range(3):
                        emit(j, 16 + jj, "s[16:19]")
                        j += 1
                        a("s_add_u32 s46, s46, 3072" if jj == 2 else "s_nop 0")

        def rbase(u, t):
            return 32 + 48 * ((0 if u == "A" else 1) + 2 * (t & 1))

        def issue(ev):
            if NOLOAD:
                return
            kind = ev[0]
            if kind == "X":
                _, u, t, slot = ev
                waitfor([("R" + u, t)])
                a(f"v_add_u32 v23, {slot * SLOT}, v22")
                rb = rbase(u, t)
                for j in range(12):
                    a(f"ds_write_b128 v23, {vr(rb + 4 * j, 4)} offset:{1024 * j}")
                return
            if state["out"] + 12 > 63:
                state["out"] = 48
                a("s_waitcnt vmcnt(48)")
            state["out"] += 12
            if kind == "R":
                _, u, t = ev
                rb = rbase(u, t)
                a("s_waitcnt lgkmcnt(0)")
                kvsrc(u, t, lambda j, v, sr: a(f"buffer_load_dwordx4 {vr(rb + 4 * j, 4)}, v{v}, {sr}, s46 offen {KVPOL}"), L)
                issued.append(("R" + u, t))
                return
            _, idx, slot, hh = ev
            a(f"s_mov_b32 m0, {slot * SLOT + hh * 12288}")
            if kind == "W":
                a("s_add_u32 s46, s43, s47")
                if hh == 1:
                    a("s_add_u32 s46, s46, 393216")
                    a("s_add_u32 s47, s47, 786432")
                    a("s_cmp_eq_u32 s47, 7864320")
                    a("s_cselect_b32 s47, 0, s47")
                for g in range(4):
                    for jj in range(3):
                        a(f"buffer_load_dwordx4 v{19 + jj}, s[20:23], s46 offen {P_WQ} lds")
                        a("s_add_u32 m0, m0, 0x400")
                        a("s_add_u32 s46, s46, 98304" if jj == 2 else "s_nop 0")
            else:
                def em(j, v, sr):
                    a(f"buffer_load_dwordx4 v{v}, {sr}, s46 offen {KVPOL} lds")
                    a("s_add_u32 m0, m0, 0x400")
                kvsrc(kind, idx, em, hh)
            issued.append((kind, idx))

        for it in sched[-1]:
            issue(it)
        for n in range(NSTEP):
            need = [x for x in step_needs(n) if x in issued]
            if not NOLOAD:
                if need:
                    waitfor(need)
                a("s_waitcnt lgkmcnt(0)")
            a("s_barrier")
            if WOPF and L == 1 and n == NSTEP + WOPF:
                a("v_lshlrev_b32 v24, 7, v2")
                a("s_mul_i32 s46, s2, 30720")
                for k in range(4):
                    a(f"buffer_load_dword v{25 + k}, v24, s[96:99], s46 offen")
                    a("s_add_u32 s46, s46, 8192")
                a("s_waitcnt vmcnt(0)")
                state["out"] = 0
            for it in sched[n]:
                issue(it)
        a("s_endpgm")

    QF = 16
    OA = 64
    SA = 160
    PF = 176
    AF = 184
    aWE, aWO, aVE, aVO = 10, 11, 12, 13
    aK = 232
    cE, cO = 236, 237
    cK = 238
    vM, vL, vAl, vMC, vT0, vT1, vPS, vXO, vOO = 242, 243, 244, 246, 247, 248, 249, 250, 251
    a.label("L1_compute")
    if NOCOMP:
        for i in range(NSTEP):
            a("s_barrier")
        a("s_endpgm")
    a("v_and_b32 v3, 15, v2")
    a("v_lshrrev_b32 v4, 5, v2")
    a("v_and_b32 v5, 31, v2")
    a("v_lshrrev_b32 v6, 4, v2")
    a("v_and_b32 v6, 1, v6")
    a("v_lshrrev_b32 v7, 2, v3")
    a("v_and_b32 v8, 3, v3")
    a("v_lshlrev_b32 v8, 3, v8")
    a("v_lshl_add_u32 v8, v6, 5, v8")
    a("v_lshrrev_b32 v9, 3, v3")
    a("v_lshlrev_b32 v9, 6, v9")
    a("v_lshl_add_u32 v14, v4, 3, v7")
    a("v_mul_u32_u24 v14, 0x180, v14")
    a("v_add_u32 v14, v14, v8")
    a(f"v_add_u32 v{aWE}, v14, v9")
    a(f"v_xor_b32 v15, 64, v9")
    a(f"v_add_u32 v{aWO}, v14, v15")
    a("v_lshl_add_u32 v14, v4, 2, v7")
    a("v_mul_u32_u24 v14, 0x180, v14")
    a("v_add_u32 v14, v14, v8")
    a(f"v_add_u32 v{aVE}, v14, v9")
    a(f"v_add_u32 v{aVO}, v14, v15")
    a("v_lshrrev_b32 v14, 1, v5")
    a("v_and_b32 v14, 7, v14")
    a("v_mul_u32_u24 v15, 0x180, v5")
    for q4 in range(4):
        a(f"v_add_u32 v9, {2 * q4}, v4")
        a("v_xor_b32 v9, v9, v14")
        a(f"v_lshl_add_u32 v{aK + q4}, v9, 4, v15")
    a("s_lshl_b32 s45, s3, 3")
    a("s_add_u32 s45, s45, s38")
    a("s_mul_i32 s45, s45, 96")
    a("s_lshl_b32 s46, s40, 5")
    a("s_add_u32 s45, s45, s46")
    a("v_add_u32 v14, s45, v5")
    a("v_lshlrev_b32 v15, 4, v4")
    a(f"v_mul_u32_u24 v{vXO}, 0x500, v14")
    a(f"v_add_u32 v{vXO}, v{vXO}, v15")
    a("s_lshr_b32 s46, s45, 5")
    a("s_mul_i32 s46, s46, 384")
    a("s_mul_i32 s47, s39, 12")
    a("s_add_u32 s46, s46, s47")
    a("s_lshl_b32 s46, s46, 10")
    a(f"v_lshlrev_b32 v{vOO}, 4, v2")
    a(f"v_add_u32 v{vOO}, s46, v{vOO}")
    a(f"v_mov_b32 v{vM}, 0xff800000")
    a(f"v_mov_b32 v{vL}, 0")
    cval = (192 ** -0.5) * math.log2(math.e)
    a(f"s_mov_b32 s49, 0x{f32bits(cval):08x}")
    a("s_cmp_eq_u32 s3, 0")
    for k, sr in enumerate((47, 52, 53)):
        a(f"s_mov_b32 s{sr}, {BRING[k] * SLOT}")
        a(f"s_cselect_b32 s{sr}, {ARING[k] * SLOT}, s{sr}")

    XB = [16, 32, 48, 160]
    XD = 3

    a("s_lshl_b32 s54, s55, 7")

    def xloads(i):
        for s in range(4):
            a(f"buffer_load_dwordx4 {vr(XB[i % 4] + 4 * s, 4)}, v{vXO}, s[8:11], s54 offen offset:{32 * s} {P_X}")
        a("s_add_u32 s54, s54, 128")
        a("s_cmp_eq_u32 s54, 1280")
        a("s_cselect_b32 s54, 0, s54")

    for i in range(XD):
        xloads(i)
    if STAG:
        a(f"s_mul_i32 s44, s3, {(NW % 3) * SLOT}")
        a("s_cmp_eq_u32 s3, 0")
        a("s_cbranch_scc1 L1_noidle")
        for i in range(NW):
            a("s_barrier")
        a.label("L1_noidle")
    for i in range(NW):
        slot = (i % 4) * SLOT
        a("s_barrier")
        stamp(a)
        if STAG:
            a(f"v_add_u32 v{cE}, s44, v{aWE}")
            a(f"v_add_u32 v{cO}, s44, v{aWO}")
            a(f"s_add_u32 s44, s44, {SLOT}")
            a(f"s_cmp_eq_u32 s44, {3 * SLOT}")
            a("s_cselect_b32 s44, 0, s44")
        else:
            a(f"v_add_u32 v{cE}, {slot}, v{aWE}")
            a(f"v_add_u32 v{cO}, {slot}, v{aWO}")
        if i + XD < NW:
            xloads(i + XD)
        a(f"s_waitcnt vmcnt({4 * (min(i + XD, NW - 1) - i)})")
        items = []
        f = 0
        for s in range(4):
            for t in range(6):
                fr = AF + 4 * (f % 12)
                areg = cE if t % 2 == 0 else cO
                reads = []
                for half in range(2):
                    off = (16 * s + 4 * half) * 384 + 128 * (t >> 1)
                    reads.append(f"ds_read_b64_tr_b16 {vr(fr + 2 * half, 2)}, v{areg} offset:{off}")
                acc = vr(OA + 16 * t, 16)
                c = "0" if (i == 0 and s == 0) else acc
                m = f"v_mfma_f32_32x32x16_bf16 {acc}, {vr(fr, 4)}, {vr(XB[i % 4] + 4 * s, 4)}, {c}"
                items.append((reads, m))
                f += 1
        rolling(a, items, 6)
    stamp(a)
    a("s_nop 15")
    for t in range(6):
        for g2 in range(2):
            fq = QF + 4 * (2 * t + g2)
            src = OA + 16 * t + 8 * g2
            for k in range(4):
                a(f"v_cvt_pk_bf16_f32 v{fq + k}, v{src + 2 * k}, v{src + 2 * k + 1}")
    a("s_nop 1")
    for ks in range(12):
        fq = QF + 4 * ks
        a(f"v_permlane32_swap_b32 v{fq}, v{fq + 2}")
        a(f"v_permlane32_swap_b32 v{fq + 1}, v{fq + 3}")
    for r in range(96):
        a(f"v_mov_b32 v{OA + r}, 0")
    a("s_mov_b32 s48, 0")

    stamp(a)
    a.label("L1_kv_loop")
    a("s_barrier")
    for q4 in range(4):
        a(f"v_add_u32 v{cK + q4}, s47, v{aK + q4}")
    a(f"v_add_u32 v{cE}, s47, v{aVE}")
    a(f"v_add_u32 v{cO}, s47, v{aVO}")
    for s in range(12):
        a(f"ds_read_b128 {vr(AF + 4 * s, 4)}, v{cK + (s & 3)} offset:{128 * (s >> 2)}")
    sacc = vr(SA, 16)
    for s in range(12):
        a(f"s_waitcnt lgkmcnt({11 - s})")
        c = "0" if s == 0 else sacc
        a(f"v_mfma_f32_32x32x16_bf16 {sacc}, {vr(AF + 4 * s, 4)}, {vr(QF + 4 * s, 4)}, {c}")
    vitems = []
    for f in range(12):
        s, t = f // 6, f % 6
        fr = AF + 4 * f
        areg = cE if t % 2 == 0 else cO
        reads = []
        for half in range(2):
            off = 12288 + (16 * s + 8 * half) * 384 + 128 * (t >> 1)
            reads.append(f"ds_read_b64_tr_b16 {vr(fr + 2 * half, 2)}, v{areg} offset:{off}")
        acc = vr(OA + 16 * t, 16)
        m = f"v_mfma_f32_32x32x16_bf16 {acc}, {vr(fr, 4)}, {vr(PF + 4 * s, 4)}, {acc}"
        vitems.append((reads, m))
    for f in range(6):
        for r in vitems[f][0]:
            a(r)
    a("s_nop 3")
    a(f"v_max3_f32 v{vT0}, v{SA}, v{SA + 1}, v{SA + 2}")
    a(f"v_max3_f32 v{vT1}, v{SA + 3}, v{SA + 4}, v{SA + 5}")
    a(f"v_max3_f32 v{vT0}, v{vT0}, v{SA + 6}, v{SA + 7}")
    a(f"v_max3_f32 v{vT1}, v{vT1}, v{SA + 8}, v{SA + 9}")
    a(f"v_max3_f32 v{vT0}, v{vT0}, v{SA + 10}, v{SA + 11}")
    a(f"v_max3_f32 v{vT1}, v{vT1}, v{SA + 12}, v{SA + 13}")
    a(f"v_max3_f32 v{vT0}, v{vT0}, v{SA + 14}, v{SA + 15}")
    a(f"v_max3_f32 v{vT0}, v{vT0}, v{vT1}, v{vM}")
    a(f"v_mov_b32 v{vT1}, v{vT0}")
    a("s_nop 1")
    a(f"v_permlane32_swap_b32 v{vT0}, v{vT1}")
    a("s_nop 1")
    a(f"v_max_f32 v{vT0}, v{vT0}, v{vT1}")
    a(f"v_sub_f32 v{vT1}, v{vM}, v{vT0}")
    a(f"v_mul_f32 v{vT1}, s49, v{vT1}")
    a(f"v_exp_f32 v{vAl}, v{vT1}")
    a(f"v_mov_b32 v{vM}, v{vT0}")
    a(f"v_mul_f32 v{vMC}, s49, v{vT0}")
    a(f"v_mov_b32 v{vAl + 1}, v{vAl}")
    for r in range(16):
        a(f"v_fma_f32 v{SA + r}, v{SA + r}, s49, -v{vMC}")
    for r in range(16):
        a(f"v_exp_f32 v{SA + r}, v{SA + r}")
    for r in range(48):
        a(f"v_pk_mul_f32 {vr(OA + 2 * r, 2)}, {vr(OA + 2 * r, 2)}, {vr(vAl, 2)}")
    a(f"v_add_f32 v{vPS}, v{SA}, v{SA + 1}")
    a(f"v_add_f32 v{vT0}, v{SA + 2}, v{SA + 3}")
    for r in range(4, 16, 2):
        a(f"v_add_f32 v{vPS}, v{vPS}, v{SA + r}")
        a(f"v_add_f32 v{vT0}, v{vT0}, v{SA + r + 1}")
    a(f"v_add_f32 v{vPS}, v{vPS}, v{vT0}")
    a(f"v_fma_f32 v{vL}, v{vL}, v{vAl}, v{vPS}")
    for k in range(8):
        a(f"v_cvt_pk_bf16_f32 v{PF + k}, v{SA + 2 * k}, v{SA + 2 * k + 1}")
    a("s_nop 1")
    for f in range(12):
        if f + 6 < 12:
            for r in vitems[f + 6][0]:
                a(r)
        last = min(f + 6, 11)
        a(f"s_waitcnt lgkmcnt({2 * (last - f)})")
        a(vitems[f][1])
    a("s_mov_b32 s46, s47")
    a("s_mov_b32 s47, s52")
    a("s_mov_b32 s52, s53")
    a("s_mov_b32 s53, s46")
    a("s_add_u32 s48, s48, 1")
    a(f"s_cmp_lt_u32 s48, {NKV}")
    a("s_cbranch_scc1 L1_kv_loop")

    stamp(a)
    a(f"v_mov_b32 v{vT1}, v{vL}")
    a("s_nop 1")
    a(f"v_permlane32_swap_b32 v{vL}, v{vT1}")
    a("s_nop 1")
    a(f"v_add_f32 v{vL}, v{vL}, v{vT1}")
    a(f"v_rcp_f32 v{vAl}, v{vL}")
    a("s_nop 7")
    a(f"v_mov_b32 v{vAl + 1}, v{vAl}")
    for r in range(48):
        a(f"v_pk_mul_f32 {vr(OA + 2 * r, 2)}, {vr(OA + 2 * r, 2)}, {vr(vAl, 2)}")
    for t in range(6):
        for g2 in range(2):
            fq = QF + 4 * (2 * t + g2)
            src = OA + 16 * t + 8 * g2
            for k in range(4):
                a(f"v_cvt_pk_bf16_f32 v{fq + k}, v{src + 2 * k}, v{src + 2 * k + 1}")
    a("s_nop 1")
    for ks in range(12):
        fq = QF + 4 * ks
        a(f"v_permlane32_swap_b32 v{fq}, v{fq + 2}")
        a(f"v_permlane32_swap_b32 v{fq + 1}, v{fq + 3}")
    a("s_nop 1")
    a("s_mov_b32 s45, 4096")
    a("s_mov_b32 s46, 8192")
    for ks in range(12):
        fq = QF + 4 * ks
        so = ["0", "s45", "s46"][ks >> 2]
        a(f"buffer_store_dwordx4 {vr(fq, 4)}, v{vOO}, s[24:27], {so} offen offset:{1024 * (ks & 3)} {P_OST}")
    if STAMP:
        a("s_waitcnt vmcnt(0)")
        stamp(a)
        a("s_waitcnt lgkmcnt(0)")
        a(f"s_cmp_eq_u32 s2, {STAMPWG}")
        a("s_cbranch_scc0 L1_end")
        a("s_cmp_eq_u32 s40, 0")
        a("s_cbranch_scc0 L1_end")
        a("s_cmp_eq_u32 s3, 0")
        a("s_cbranch_scc0 L1_end")
        srd(a, 50, 256, 56)
        a("v_mov_b32 v1, 0")
        for k in range(_stamp_n[0]):
            a(f"s_sub_u32 s55, s{60 + 2 * k}, s60")
            a("v_mov_b32 v3, s55")
            a(f"buffer_store_dword v3, v1, s[56:59], 0 offen offset:{4 * k}")
    a.label("L1_end")
    a("s_endpgm")


K2 = "oproj_kernel"
S2 = 16384
NS2 = 8
NST2 = 24
OD2 = 7
PART_OFF = 18874368
PART_SLICE = 3932160


def gen_oproj(a):
    a.raw(f".globl {K2}")
    a.raw(".p2align 8")
    a.raw(f".type {K2},@function")
    a.label(K2)
    a("s_cmp_ge_u32 s2, 240")
    a("s_cbranch_scc1 L2_end")
    a("s_load_dwordx2 s[28:29], s[0:1], 32")
    a("s_load_dwordx2 s[30:31], s[0:1], 56")
    a("s_load_dwordx2 s[50:51], s[0:1], 48")
    a("s_load_dwordx2 s[34:35], s[0:1], 40")
    _stamp_n[0] = 0
    stamp(a, STAMP2)
    a("v_lshrrev_b32 v1, 6, v0")
    a("v_and_b32 v2, 63, v0")
    a("v_readfirstlane_b32 s40, v1")
    a("s_and_b32 s38, s2, 3")
    a("s_lshr_b32 s39, s2, 3")
    a("s_bfe_u32 s41, s2, 0x10002")
    a("s_mul_i32 s41, s41, 30")
    a("s_add_u32 s39, s39, s41")
    a("s_mul_i32 s41, s39, 0xcccd")
    a("s_lshr_b32 s41, s41, 18")
    a("s_mul_i32 s42, s41, 5")
    a("s_sub_u32 s42, s39, s42")
    a("s_waitcnt lgkmcnt(0)")
    srd(a, 28, 7864320, 8)
    srd(a, 30, 18874368, 12)
    a(f"s_add_u32 s32, s30, {PART_OFF}")
    a("s_addc_u32 s33, s31, 0")
    srd(a, 32, 4 * PART_SLICE, 16)
    srd(a, 50, 256, 20)
    srd(a, 34, 1966080, 24)
    a("s_cmp_ge_u32 s40, 4")
    a("s_cbranch_scc0 L2_compute")
    a("v_lshrrev_b32 v3, 4, v2")
    a("v_and_b32 v4, 15, v2")
    a("v_lshlrev_b32 v5, 2, v3")
    a("v_xor_b32 v4, v4, v5")
    a("v_lshlrev_b32 v4, 4, v4")
    a("v_mul_u32_u24 v5, 0x500, v3")
    a("v_add_u32 v10, v4, v5")
    a("s_sub_u32 s43, s40, 4")
    a("s_mul_i32 s45, s38, 1966080")
    a("s_lshl_b32 s46, s42, 8")
    a("s_add_u32 s45, s45, s46")
    a("s_mul_i32 s46, s43, 40960")
    a("s_add_u32 s45, s45, s46")
    a("s_lshl_b32 s44, s43, 13")

    def issue(i):
        a(f"s_add_u32 m0, s44, {(i % NS2) * S2}")
        a("s_nop 0")
        for jj in range(8):
            a(f"buffer_load_dwordx4 v10, s[8:11], s45 offen {P_WO} lds")
            a("s_add_u32 m0, m0, 0x400")
            a(f"s_add_u32 s45, s45, {5120 if jj < 7 else 5120 + 40960}")

    for i in range(6):
        issue(i)
    nissued = 6
    for n in range(NST2 // 2):
        a(f"s_waitcnt vmcnt({8 * (nissued - 2 * n - 2)})")
        a("s_barrier")
        for _ in range(2):
            if nissued < NST2:
                issue(nissued)
                nissued += 1
    a("s_endpgm")
    OB = [16 + 16 * i for i in range(8)]
    AC = 144
    AF = 208
    aW = 10
    vXO, vPO = 14, 15
    a.label("L2_compute")
    a("v_and_b32 v3, 15, v2")
    a("v_lshrrev_b32 v4, 5, v2")
    a("v_and_b32 v5, 31, v2")
    a("v_lshrrev_b32 v6, 4, v2")
    a("v_and_b32 v6, 1, v6")
    a("v_lshrrev_b32 v7, 2, v3")
    a("v_and_b32 v8, 3, v3")
    a("v_lshlrev_b32 v8, 3, v8")
    a("v_lshl_add_u32 v8, v6, 5, v8")
    a("v_lshl_add_u32 v9, v4, 3, v7")
    a("v_lshl_add_u32 v8, v9, 8, v8")
    for t in range(4):
        a(f"v_xor_b32 v9, {t}, v7")
        a(f"v_lshl_add_u32 v{aW + t}, v9, 6, v8")
    a("s_lshl_b32 s45, s41, 7")
    a("s_lshl_b32 s46, s40, 5")
    a("s_add_u32 s45, s45, s46")
    a("v_add_u32 v9, s45, v5")
    a("s_lshr_b32 s46, s45, 5")
    a("s_mul_i32 s46, s46, 384")
    a("s_mul_i32 s47, s38, 96")
    a("s_add_u32 s46, s46, s47")
    a("s_lshl_b32 s48, s46, 10")
    a(f"v_lshlrev_b32 v{vXO}, 4, v2")
    if FUSERED:
        a("s_lshl_b32 s47, s39, 2")
        a("s_add_u32 s47, s47, s40")
        a("s_lshl_b32 s47, s47, 16")
        a(f"v_lshlrev_b32 v{vPO}, 4, v2")
        a(f"v_add_u32 v{vPO}, s47, v{vPO}")
        a("v_mul_u32_u24 v7, 0x500, v9")
        a("v_lshl_add_u32 v7, v4, 4, v7")
        a("s_lshl_b32 s46, s42, 8")
        a("s_lshl_b32 s47, s38, 6")
        a("s_add_u32 s46, s46, s47")
        a("v_add_u32 v7, s46, v7")
    else:
        a(f"s_mul_i32 s46, s38, {PART_SLICE}")
        a("s_lshl_b32 s47, s39, 2")
        a("s_add_u32 s47, s47, s40")
        a("s_lshl_b32 s47, s47, 14")
        a("s_add_u32 s46, s46, s47")
        a(f"v_lshlrev_b32 v{vPO}, 4, v2")
        a(f"v_add_u32 v{vPO}, s46, v{vPO}")
    for t in range(4):
        a(f"v_add_u32 v{3 + t}, 0x10000, v{aW + t}")

    def oloads(i):
        for s in range(4):
            a(f"buffer_load_dwordx4 {vr(OB[i % 8] + 4 * s, 4)}, v{vXO}, s[12:15], s48 offen offset:{1024 * s} {P_OLD}")
        a("s_add_u32 s48, s48, 4096")

    for i in range(OD2):
        oloads(i)
    fcount = 0
    for i in range(NST2):
        sl = i % NS2
        abase = aW if sl < 4 else 3
        slot = (sl % 4) * S2
        if i % 2 == 0:
            a("s_barrier")
            stamp(a, STAMP2)
        if i + OD2 < NST2:
            oloads(i + OD2)
        a(f"s_waitcnt vmcnt({4 * (min(i + OD2, NST2 - 1) - i)})")
        items = []
        for s in range(4):
            for t in range(4):
                fr = AF + 4 * (fcount % 12)
                fcount += 1
                reads = []
                for half in range(2):
                    off = slot + (16 * s + 4 * half) * 256
                    reads.append(f"ds_read_b64_tr_b16 {vr(fr + 2 * half, 2)}, v{abase + t} offset:{off}")
                acc = vr(AC + 16 * t, 16)
                c = "0" if (i == 0 and s == 0) else acc
                m = f"v_mfma_f32_32x32x16_bf16 {acc}, {vr(fr, 4)}, {vr(OB[i % 8] + 4 * s, 4)}, {c}"
                items.append((reads, m))
        rolling(a, items, 6)
    a("s_nop 15")
    if FUSERED:
        a("s_lshl_b32 s46, s38, 12")
        for t in range(4):
            a(f"s_add_u32 s45, s46, {16384 * t}")
            for q in range(4):
                a(f"buffer_store_dwordx4 {vr(AC + 16 * t + 4 * q, 4)}, v{vPO}, s[16:19], s45 offen offset:{1024 * q} sc1")
        a("s_waitcnt vmcnt(0)")
        a("s_barrier")
        a("s_cmp_eq_u32 s40, 0")
        a("s_cbranch_scc0 L2_wait")
        a("s_mov_b64 exec, 1")
        a("s_lshl_b32 s45, s39, 2")
        a("v_mov_b32 v16, s45")
        a("v_mov_b32 v17, 1")
        a("buffer_atomic_add v17, v16, s[20:23], 0 offen sc1")
        a("s_mov_b32 s46, 0")
        a.label("L2_poll")
        a("buffer_load_dword v18, v16, s[20:23], 0 offen sc1")
        a("s_waitcnt vmcnt(0)")
        a("v_readfirstlane_b32 s45, v18")
        a("s_add_u32 s46, s46, 1")
        a("s_cmp_ge_u32 s45, 4")
        a("s_cbranch_scc1 L2_polldone")
        a("s_sleep 1")
        a("s_cmp_lt_u32 s46, 0x400000")
        a("s_cbranch_scc1 L2_poll")
        a.label("L2_polldone")
        a("s_mov_b64 exec, -1")
        a.label("L2_wait")
        a("s_barrier")
        a("s_lshl_b32 s46, s38, 14")
        for src in range(4):
            a(f"s_add_u32 s45, s46, {4096 * src}")
            for q in range(4):
                a(f"buffer_load_dwordx4 {vr(16 + 16 * src + 4 * q, 4)}, v{vPO}, s[16:19], s45 offen offset:{1024 * q} sc1")
        for src in range(1, 4):
            a(f"s_waitcnt vmcnt({4 * (3 - src)})")
            for e in range(16):
                a(f"v_add_f32 v{16 + e}, v{16 + e}, v{16 + 16 * src + e}")
        for e in range(8):
            a(f"v_cvt_pk_bf16_f32 v{32 + e}, v{16 + 2 * e}, v{17 + 2 * e}")
        a("s_nop 1")
        for g2 in range(2):
            a(f"v_permlane32_swap_b32 v{32 + 4 * g2}, v{34 + 4 * g2}")
            a(f"v_permlane32_swap_b32 v{33 + 4 * g2}, v{35 + 4 * g2}")
        a("s_nop 1")
        for g2 in range(2):
            a(f"buffer_store_dwordx4 {vr(32 + 4 * g2, 4)}, v7, s[24:27], 0 offen offset:{32 * g2}")
    else:
      for t in range(4):
        a(f"s_mov_b32 s45, {4096 * t}")
        for q in range(4):
            a(f"buffer_store_dwordx4 {vr(AC + 16 * t + 4 * q, 4)}, v{vPO}, s[16:19], s45 offen offset:{1024 * q} {P_PART}")
    if STAMP2:
        stamp(a, STAMP2)
        a("s_waitcnt vmcnt(0)")
        stamp(a, STAMP2)
        a("s_waitcnt lgkmcnt(0)")
        a(f"s_cmp_eq_u32 s2, {STAMPWG}")
        a("s_cbranch_scc0 L2_end")
        a("s_cmp_eq_u32 s40, 0")
        a("s_cbranch_scc0 L2_end")
        srd(a, 50, 256, 56)
        a("v_mov_b32 v1, 0")
        for k in range(_stamp_n[0]):
            a(f"s_sub_u32 s55, s{60 + 2 * k}, s60")
            a("v_mov_b32 v3, s55")
            a(f"buffer_store_dword v3, v1, s[56:59], 0 offen offset:{4 * k}")
    a.label("L2_end")
    a("s_endpgm")


K3 = "reduce_kernel"


def gen_reduce(a):
    a.raw(f".globl {K3}")
    a.raw(".p2align 8")
    a.raw(f".type {K3},@function")
    a.label(K3)
    a("s_cmp_ge_u32 s2, 960")
    a("s_cbranch_scc1 L3_end")
    a("s_load_dwordx2 s[28:29], s[0:1], 40")
    a("s_load_dwordx2 s[30:31], s[0:1], 56")
    a("s_lshl_b32 s3, s2, 8")
    a("v_add_u32 v1, s3, v0")
    a("v_lshlrev_b32 v2, 4, v1")
    a("s_lshr_b32 s39, s2, 4")
    a("s_mul_i32 s41, s39, 0xcccd")
    a("s_lshr_b32 s41, s41, 18")
    a("s_mul_i32 s42, s41, 5")
    a("s_sub_u32 s42, s39, s42")
    a("s_lshr_b32 s43, s2, 2")
    a("s_and_b32 s43, s43, 3")
    a("s_and_b32 s44, s2, 3")
    a("s_lshl_b32 s45, s41, 7")
    a("s_lshl_b32 s46, s43, 5")
    a("s_add_u32 s45, s45, s46")
    a("s_lshl_b32 s46, s42, 7")
    a("s_lshl_b32 s47, s44, 5")
    a("s_add_u32 s46, s46, s47")
    a("v_and_b32 v3, 31, v0")
    a("v_add_u32 v3, s45, v3")
    a("v_mul_u32_u24 v3, 0x500, v3")
    a("v_lshrrev_b32 v4, 6, v0")
    a("v_lshlrev_b32 v4, 3, v4")
    a("v_bfe_u32 v5, v0, 5, 1")
    a("v_lshl_add_u32 v4, v5, 2, v4")
    a("v_add_u32 v4, s46, v4")
    a("v_lshl_add_u32 v3, v4, 1, v3")
    a("s_waitcnt lgkmcnt(0)")
    srd(a, 28, 1966080, 8)
    a(f"s_add_u32 s32, s30, {PART_OFF}")
    a("s_addc_u32 s33, s31, 0")
    srd(a, 32, 4 * PART_SLICE, 12)
    for k in range(1, 4):
        a(f"s_mov_b32 s{36 + k}, {k * PART_SLICE}")
    for k in range(4):
        so = "0" if k == 0 else f"s{36 + k}"
        a(f"buffer_load_dwordx4 {vr(8 + 4 * k, 4)}, v2, s[12:15], {so} offen {P_RED}")
    a("s_waitcnt vmcnt(2)")
    for e in range(4):
        a(f"v_add_f32 v{8 + e}, v{8 + e}, v{12 + e}")
    a("s_waitcnt vmcnt(0)")
    for e in range(4):
        a(f"v_add_f32 v{16 + e}, v{16 + e}, v{20 + e}")
    for e in range(4):
        a(f"v_add_f32 v{8 + e}, v{8 + e}, v{16 + e}")
    for e in range(2):
        a(f"v_cvt_pk_bf16_f32 v{6 + e}, v{8 + 2 * e}, v{9 + 2 * e}")
    a("buffer_store_dwordx2 v[6:7], v3, s[8:11], 0 offen")
    a.label("L3_end")
    a("s_endpgm")


def kd(name, vgpr, sgpr=102):
    acc = (vgpr + 3) // 4 * 4
    return f""".p2align 6
.amdhsa_kernel {name}
  .amdhsa_next_free_vgpr {vgpr}
  .amdhsa_next_free_sgpr {sgpr}
  .amdhsa_accum_offset {acc}
  .amdhsa_group_segment_fixed_size 0
  .amdhsa_kernarg_size 64
  .amdhsa_user_sgpr_count 2
  .amdhsa_user_sgpr_kernarg_segment_ptr 1
  .amdhsa_system_sgpr_workgroup_id_x 1
.end_amdhsa_kernel
"""


def main():
    a = Asm()
    out = HEADER
    out += f"; @launch kernel={MAIN} grid=(256,1,1) block=(512,1,1) lds={SLOT * 6}\n"
    out += f"; @launch kernel={K2} grid=(240,1,1) block=(384,1,1) lds={S2 * NS2}\n"
    if not FUSERED:
        out += f"; @launch kernel={K3} grid=(960,1,1) block=(256,1,1) lds=0\n"
    out += '.amdgcn_target "amdgcn-amd-amdhsa--gfx950"\n.text\n'
    gen_attn(a)
    gen_oproj(a)
    if not FUSERED:
        gen_reduce(a)
    out += a.text()
    out += '.section .rodata,"a"\n'
    out += kd(MAIN, 256)
    out += kd(K2, 256)
    if not FUSERED:
        out += kd(K3, 24)
    open(OUT, "w").write(out)
    print("wrote", OUT, len(out), "bytes")


if __name__ == "__main__":
    main()
```

```python
import math
import struct
import sys
import os
NOCOMP=int(os.environ.get("NOCOMP","0"))
NOLOAD=int(os.environ.get("NOLOAD","0"))
KVPOL=os.environ.get("KVPOL","nt")
NTOUCH=int(os.environ.get("NTOUCH","0"))
STAMP=int(os.environ.get("STAMP","0"))
MAP=int(os.environ.get("MAP","1"))
ROT=int(os.environ.get("ROT","1"))
STAMPWG=int(os.environ.get("STAMPWG","0"))
STAMP2=int(os.environ.get("STAMP2","0"))
FUSERED=int(os.environ.get("FUSERED","0"))
P_PART=os.environ.get("P_PART","nt")
P_RED=os.environ.get("P_RED","nt")
P_OST=os.environ.get("P_OST","")
P_WO=os.environ.get("P_WO","")
P_OLD=os.environ.get("P_OLD","nt")
P_WQ=os.environ.get("P_WQ","")
P_X=os.environ.get("P_X","")
WOPF=int(os.environ.get("WOPF","-2"))
STAG=int(os.environ.get("STAG","0"))
LSTAMP=int(os.environ.get("LSTAMP","0"))
TLBT=int(os.environ.get("TLBT","0"))
PTOUCH=int(os.environ.get("PTOUCH","0"))
APF=int(os.environ.get("APF","4"))

OUT = os.environ.get("OUT", "standalone__mha_block_cached__near_ridge.s")

HEADER = open("standalone__mha_block_cached__near_ridge.s.ref").read().split("; Override launch geometry")[0]

MAIN = "standalone__mha_block_cached__near_ridge_kernel"


def f32bits(x):
    return struct.unpack("<I", struct.pack("<f", x))[0]


class Asm:
    def __init__(self):
        self.lines = []

    def __call__(self, s):
        self.lines.append("    " + s)

    def label(self, l):
        self.lines.append(l + ":")

    def raw(self, s):
        self.lines.append(s)

    def text(self):
        return "\n".join(self.lines) + "\n"


def vr(a, n):
    return f"v[{a}:{a + n - 1}]"


def srd(a, base, nbytes, sreg):
    a(f"s_mov_b32 s{sreg}, s{base}")
    a(f"s_and_b32 s{sreg + 1}, s{base + 1}, 0xffff")
    a(f"s_mov_b32 s{sreg + 2}, {nbytes}")
    a(f"s_mov_b32 s{sreg + 3}, 0x00020000")


_stamp_n = [0]


def stamp(a, on=None):
    if not (STAMP if on is None else on):
        return
    k = _stamp_n[0]
    _stamp_n[0] += 1
    a(f"s_memtime s[{60 + 2 * k}:{61 + 2 * k}]")


def rolling(a, items, window, nslots_reads=None):
    n = len(items)
    nr = [len(it[0]) for it in items]
    for f in range(min(window, n)):
        for r in items[f][0]:
            a(r)
    for f in range(n):
        if f + window < n:
            for r in items[f + window][0]:
                a(r)
        last = min(f + window, n - 1)
        outstanding = sum(nr[f + 1:last + 1])
        assert outstanding <= 15
        a(f"s_waitcnt lgkmcnt({outstanding})")
        a(items[f][1])


SLOT = 24576
NW = 10
NKV = int(os.environ.get("NKV", "32"))
NST = NW + NKV
REGST = 0
if STAG:
    ARING = [3, 4, 5]
    BRING = [2, 0, 1]
    NSTEP = NST + NW
else:
    ARING = [2, 3, 0]
    BRING = [4, 5, 1]
    NSTEP = NST


def attn_schedule(L):
    sched = {n: [] for n in range(-1, NSTEP)}
    ring = {"A": ARING, "B": BRING}

    def both(n, kind, idx, slot):
        sched[n] += [(kind, idx, slot, 0), (kind, idx, slot, 1)]

    if not STAG:
        for i in range(2):
            sched[-1].append(("W", i, i, L, True))
        if L == 0:
            for n in range(0, 8):
                both(n, "W", n + 2, (n + 2) % 4)
        else:
            BPF = int(os.environ.get("BPF", "5"))
            dma = {7: [("A", 0)], 8: [("A", 1)], 9: [("A", 2)], 10: [("B", 2)]}
            if BPF < 0:
                dma[-1] = [("B", 0), ("B", 1)]
            else:
                dma[BPF] = [("B", 0)]
                dma[BPF + 1] = [("B", 1)]
            for n, l in dma.items():
                for (u, t) in l:
                    if t < NKV:
                        both(n, u, t, ring[u][t % 3])
        for t in range(1, NKV):
            if t + 2 < NKV:
                sched[NW + t].append(("A", t + 2, ARING[(t + 2) % 3], L))
                sched[NW + t].append(("B", t + 2, BRING[(t + 2) % 3], L))
        return sched
    if L == 0:
        both(-1, "W", 0, 0)
        both(-1, "W", 1, 1)
        for n in range(0, 2 * NW - 2):
            both(n, "W", n + 2, (n + 2) % 3)
    else:
        for t in range(3):
            both(APF + t, "A", t, ARING[t])
            both(2 * NW - 2 + t, "B", t, BRING[t])
    for t in range(1, NKV - 2):
        n = NW + t
        if n < 2 * NW:
            if L == 1:
                both(n, "A", t + 2, ARING[(t + 2) % 3])
        else:
            sched[n].append(("A", t + 2, ARING[(t + 2) % 3], L))
        sched[2 * NW + t].append(("B", t + 2, BRING[(t + 2) % 3], L))
    return sched


def step_needs(n):
    if not STAG:
        return [("W", n)] if n < NW else [("A", n - NW), ("B", n - NW)]
    need = []
    if n < 2 * NW:
        need.append(("W", n))
    if NW <= n < NW + NKV:
        need.append(("A", n - NW))
    if n >= 2 * NW:
        need.append(("B", n - 2 * NW))
    return need


def gen_attn(a):
    a.raw(f".globl {MAIN}")
    a.raw(".p2align 8")
    a.raw(f".type {MAIN},@function")
    a.label(MAIN)
    a("s_cmp_ge_u32 s2, 256")
    a("s_cbranch_scc1 L1_end")
    a("s_load_dwordx8 s[28:35], s[0:1], 0")
    a("s_load_dwordx2 s[36:37], s[0:1], 56")
    a("s_load_dwordx2 s[50:51], s[0:1], 48")
    a("s_load_dwordx2 s[92:93], s[0:1], 32")
    stamp(a, STAMP or LSTAMP)
    a("v_lshrrev_b32 v1, 6, v0")
    a("v_and_b32 v2, 63, v0")
    a("v_readfirstlane_b32 s40, v1")
    a("s_and_b32 s39, s2, 31")
    a("s_lshr_b32 s38, s2, 5")
    a("s_lshr_b32 s3, s40, 2")
    a("s_and_b32 s40, s40, 3")
    a("s_lshr_b32 s55, s39, 3")
    a("s_mul_i32 s55, s55, 3")
    a("s_add_u32 s55, s55, s38")
    a("s_cmp_ge_u32 s55, 10")
    a("s_cselect_b32 s54, 10, 0")
    a("s_sub_u32 s55, s55, s54")
    if not ROT:
        a("s_mov_b32 s55, 0")
    a("s_waitcnt lgkmcnt(0)")
    stamp(a, LSTAMP)
    srd(a, 28, 1966080, 8)
    srd(a, 30, 201326592, 12)
    srd(a, 32, 201326592, 16)
    srd(a, 34, 7864320, 20)
    srd(a, 36, 18874368, 24)
    srd(a, 92, 7864320, 96)
    a("s_cmp_eq_u32 s40, 3")
    a("s_cbranch_scc0 L1_compute")

    for jj in range(6):
        a(f"v_add_u32 v3, {64 * jj}, v2")
        a("v_mul_u32_u24 v4, 0xaab, v3")
        a("v_lshrrev_b32 v4, 16, v4")
        a("v_mul_u32_u24 v5, 24, v4")
        a("v_sub_u32 v5, v3, v5")
        a("v_lshrrev_b32 v6, 1, v4")
        a("v_and_b32 v7, 7, v6")
        a("v_xor_b32 v7, v7, v5")
        a("v_lshlrev_b32 v7, 4, v7")
        a("v_mul_u32_u24 v8, 0x180, v4")
        a(f"v_add_u32 v{10 + jj}, v7, v8")
        if jj < 3:
            a("v_and_b32 v7, 1, v6")
            a("v_lshlrev_b32 v7, 2, v7")
            a("v_xor_b32 v7, v7, v5")
            a("v_lshlrev_b32 v7, 4, v7")
            a(f"v_add_u32 v{16 + jj}, v7, v8")
            a("v_mul_u32_u24 v8, 0x3000, v4")
            a(f"v_add_u32 v{19 + jj}, v7, v8")
    a("s_lshl_b32 s41, s38, 5")
    a("s_add_u32 s41, s41, s39")
    a("s_mul_i32 s41, s41, 393216")
    a(f"s_add_u32 s42, s41, {256 * 393216}")
    a("s_mul_i32 s43, s39, 384")
    a("s_mul_i32 s45, s3, 12288")
    a("s_mul_i32 s47, s55, 786432")
    a("v_lshlrev_b32 v22, 4, v2")
    a("v_add_u32 v22, s45, v22")
    a("s_cmp_eq_u32 s3, 0")
    a("s_cbranch_scc0 L1_loader1")
    for L in range(2):
        sched = attn_schedule(L)
        if L == 1:
            a.label("L1_loader1")
        issued = []
        state = {"out": 0}

        def waitfor(need):
            last = max(i for i, x in enumerate(issued) if x in need)
            cnt = 12 * (len(issued) - 1 - last)
            if cnt < state["out"]:
                a(f"s_waitcnt vmcnt({cnt})")
                state["out"] = cnt

        def kvsrc(u, idx, emit, hh):
            base = "s41" if u == "A" else "s42"
            a(f"s_add_u32 s46, {base}, {idx * 12288}")
            j = 0
            if hh == 0:
                for half in range(2):
                    for jj in range(6):
                        emit(j, 10 + jj, "s[12:15]")
                        j += 1
                        a("s_add_u32 s46, s46, 6144" if jj == 5 else "s_nop 0")
            else:
                for g in range(4):
                    for jj in range(3):
                        emit(j, 16 + jj, "s[16:19]")
                        j += 1
                        a("s_add_u32 s46, s46, 3072" if jj == 2 else "s_nop 0")

        def rbase(u, t):
            return 32 + 48 * ((0 if u == "A" else 1) + 2 * (t & 1))

        def issue(ev):
            if NOLOAD:
                return
            kind = ev[0]
            if kind == "X":
                _, u, t, slot = ev
                waitfor([("R" + u, t)])
                a(f"v_add_u32 v23, {slot * SLOT}, v22")
                rb = rbase(u, t)
                for j in range(12):
                    a(f"ds_write_b128 v23, {vr(rb + 4 * j, 4)} offset:{1024 * j}")
                return
            if state["out"] + 12 > 63:
                state["out"] = 48
                a("s_waitcnt vmcnt(48)")
            state["out"] += 12
            if kind == "R":
                _, u, t = ev
                rb = rbase(u, t)
                a("s_waitcnt lgkmcnt(0)")
                kvsrc(u, t, lambda j, v, sr: a(f"buffer_load_dwordx4 {vr(rb + 4 * j, 4)}, v{v}, {sr}, s46 offen {KVPOL}"), L)
                issued.append(("R" + u, t))
                return
            idx, slot, hh = ev[1:4]
            a(f"s_mov_b32 m0, {slot * SLOT + hh * 12288}")
            if kind == "W":
                a("s_add_u32 s46, s43, s47")
                if hh == 1:
                    a("s_add_u32 s46, s46, 393216")
                if hh == 1 or len(ev) > 4:
                    a("s_add_u32 s47, s47, 786432")
                    a("s_cmp_eq_u32 s47, 7864320")
                    a("s_cselect_b32 s47, 0, s47")
                for g in range(4):
                    for jj in range(3):
                        a(f"buffer_load_dwordx4 v{19 + jj}, s[20:23], s46 offen {P_WQ} lds")
                        a("s_add_u32 m0, m0, 0x400")
                        a("s_add_u32 s46, s46, 98304" if jj == 2 else "s_nop 0")
            else:
                def em(j, v, sr):
                    a(f"buffer_load_dwordx4 v{v}, {sr}, s46 offen {KVPOL} lds")
                    a("s_add_u32 m0, m0, 0x400")
                kvsrc(kind, idx, em, hh)
            issued.append((kind, idx))

        if L == 0:
            stamp(a, LSTAMP)
        for it in sched[-1]:
            issue(it)
        if L == 0:
            stamp(a, LSTAMP)
        for n in range(NSTEP):
            need = [x for x in step_needs(n) if x in issued]
            if not NOLOAD:
                if need:
                    waitfor(need)
                a("s_waitcnt lgkmcnt(0)")
            if L == 0 and n < 4:
                stamp(a, LSTAMP)
            a("s_barrier")
            if WOPF and L == 1 and n == NSTEP + WOPF:
                a("v_lshlrev_b32 v24, 7, v2")
                a("s_mul_i32 s46, s2, 30720")
                for k in range(4):
                    a(f"buffer_load_dword v{25 + k}, v24, s[96:99], s46 offen")
                    a("s_add_u32 s46, s46, 8192")
                a("s_waitcnt vmcnt(0)")
                state["out"] = 0
            for it in sched[n]:
                issue(it)
        if LSTAMP and L == 0:
            a("s_waitcnt lgkmcnt(0)")
            a(f"s_cmp_eq_u32 s2, {STAMPWG}")
            a("s_cbranch_scc0 L1_end")
            srd(a, 50, 256, 56)
            a("v_mov_b32 v1, 0")
            for k in range(_stamp_n[0]):
                a(f"s_sub_u32 s55, s{60 + 2 * k}, s60")
                a("v_mov_b32 v3, s55")
                a(f"buffer_store_dword v3, v1, s[56:59], 0 offen offset:{4 * k}")
        a("s_endpgm")

    QF = 16
    OA = 64
    SA = 160
    PF = 176
    AF = 184
    aWE, aWO, aVE, aVO = 10, 11, 12, 13
    aK = 232
    cE, cO = 236, 237
    cK = 238
    vM, vL, vAl, vMC, vT0, vT1, vPS, vXO, vOO = 242, 243, 244, 246, 247, 248, 249, 250, 251
    a.label("L1_compute")
    if TLBT:
        a(f"s_mov_b32 s45, {TLBT}")
        a("v_mul_lo_u32 v3, v2, s45")
        a("s_lshl_b32 s46, s40, 1")
        a("s_add_u32 s46, s46, s3")
        a(f"s_mul_i32 s46, s46, {64 * TLBT}")
        nt = (7864320 + 6 * 64 * TLBT - 1) // (6 * 64 * TLBT)
        for k in range(nt):
            a(f"buffer_load_dword v{240 + (k & 7)}, v3, s[20:23], s46 offen")
            a(f"s_add_u32 s46, s46, {6 * 64 * TLBT}")
    if NOCOMP:
        for i in range(NSTEP):
            a("s_barrier")
        a("s_endpgm")
    a("v_and_b32 v3, 15, v2")
    a("v_lshrrev_b32 v4, 5, v2")
    a("v_and_b32 v5, 31, v2")
    a("v_lshrrev_b32 v6, 4, v2")
    a("v_and_b32 v6, 1, v6")
    a("v_lshrrev_b32 v7, 2, v3")
    a("v_and_b32 v8, 3, v3")
    a("v_lshlrev_b32 v8, 3, v8")
    a("v_lshl_add_u32 v8, v6, 5, v8")
    a("v_lshrrev_b32 v9, 3, v3")
    a("v_lshlrev_b32 v9, 6, v9")
    a("v_lshl_add_u32 v14, v4, 3, v7")
    a("v_mul_u32_u24 v14, 0x180, v14")
    a("v_add_u32 v14, v14, v8")
    a(f"v_add_u32 v{aWE}, v14, v9")
    a(f"v_xor_b32 v15, 64, v9")
    a(f"v_add_u32 v{aWO}, v14, v15")
    a("v_lshl_add_u32 v14, v4, 2, v7")
    a("v_mul_u32_u24 v14, 0x180, v14")
    a("v_add_u32 v14, v14, v8")
    a(f"v_add_u32 v{aVE}, v14, v9")
    a(f"v_add_u32 v{aVO}, v14, v15")
    a("v_lshrrev_b32 v14, 1, v5")
    a("v_and_b32 v14, 7, v14")
    a("v_mul_u32_u24 v15, 0x180, v5")
    for q4 in range(4):
        a(f"v_add_u32 v9, {2 * q4}, v4")
        a("v_xor_b32 v9, v9, v14")
        a(f"v_lshl_add_u32 v{aK + q4}, v9, 4, v15")
    a("s_lshl_b32 s45, s3, 3")
    a("s_add_u32 s45, s45, s38")
    a("s_mul_i32 s45, s45, 96")
    a("s_lshl_b32 s46, s40, 5")
    a("s_add_u32 s45, s45, s46")
    a("v_add_u32 v14, s45, v5")
    a("v_lshlrev_b32 v15, 4, v4")
    a(f"v_mul_u32_u24 v{vXO}, 0x500, v14")
    a(f"v_add_u32 v{vXO}, v{vXO}, v15")
    a("s_lshr_b32 s46, s45, 5")
    a("s_mul_i32 s46, s46, 384")
    a("s_mul_i32 s47, s39, 12")
    a("s_add_u32 s46, s46, s47")
    a("s_lshl_b32 s46, s46, 10")
    a(f"v_lshlrev_b32 v{vOO}, 4, v2")
    a(f"v_add_u32 v{vOO}, s46, v{vOO}")
    a(f"v_mov_b32 v{vM}, 0xff800000")
    a(f"v_mov_b32 v{vL}, 0")
    cval = (192 ** -0.5) * math.log2(math.e)
    a(f"s_mov_b32 s49, 0x{f32bits(cval):08x}")
    a("s_cmp_eq_u32 s3, 0")
    for k, sr in enumerate((47, 52, 53)):
        a(f"s_mov_b32 s{sr}, {BRING[k] * SLOT}")
        a(f"s_cselect_b32 s{sr}, {ARING[k] * SLOT}, s{sr}")

    XB = [16, 32, 48, 160]
    XD = 3

    a("s_lshl_b32 s54, s55, 7")

    def xloads(i):
        for s in range(4):
            a(f"buffer_load_dwordx4 {vr(XB[i % 4] + 4 * s, 4)}, v{vXO}, s[8:11], s54 offen offset:{32 * s} {P_X}")
        a("s_add_u32 s54, s54, 128")
        a("s_cmp_eq_u32 s54, 1280")
        a("s_cselect_b32 s54, 0, s54")

    for i in range(XD):
        xloads(i)
    if STAG:
        a(f"s_mul_i32 s44, s3, {(NW % 3) * SLOT}")
        a("s_cmp_eq_u32 s3, 0")
        a("s_cbranch_scc1 L1_noidle")
        for i in range(NW):
            a("s_barrier")
        a.label("L1_noidle")
    for i in range(NW):
        slot = (i % 4) * SLOT
        a("s_barrier")
        stamp(a)
        if STAG:
            a(f"v_add_u32 v{cE}, s44, v{aWE}")
            a(f"v_add_u32 v{cO}, s44, v{aWO}")
            a(f"s_add_u32 s44, s44, {SLOT}")
            a(f"s_cmp_eq_u32 s44, {3 * SLOT}")
            a("s_cselect_b32 s44, 0, s44")
        else:
            a(f"v_add_u32 v{cE}, {slot}, v{aWE}")
            a(f"v_add_u32 v{cO}, {slot}, v{aWO}")
        if i + XD < NW:
            xloads(i + XD)
        a(f"s_waitcnt vmcnt({4 * (min(i + XD, NW - 1) - i)})")
        items = []
        f = 0
        for s in range(4):
            for t in range(6):
                fr = AF + 4 * (f % 12)
                areg = cE if t % 2 == 0 else cO
                reads = []
                for half in range(2):
                    off = (16 * s + 4 * half) * 384 + 128 * (t >> 1)
                    reads.append(f"ds_read_b64_tr_b16 {vr(fr + 2 * half, 2)}, v{areg} offset:{off}")
                acc = vr(OA + 16 * t, 16)
                c = "0" if (i == 0 and s == 0) else acc
                m = f"v_mfma_f32_32x32x16_bf16 {acc}, {vr(fr, 4)}, {vr(XB[i % 4] + 4 * s, 4)}, {c}"
                items.append((reads, m))
                f += 1
        rolling(a, items, 6)
    stamp(a)
    a("s_nop 15")
    for t in range(6):
        for g2 in range(2):
            fq = QF + 4 * (2 * t + g2)
            src = OA + 16 * t + 8 * g2
            for k in range(4):
                a(f"v_cvt_pk_bf16_f32 v{fq + k}, v{src + 2 * k}, v{src + 2 * k + 1}")
    a("s_nop 1")
    for ks in range(12):
        fq = QF + 4 * ks
        a(f"v_permlane32_swap_b32 v{fq}, v{fq + 2}")
        a(f"v_permlane32_swap_b32 v{fq + 1}, v{fq + 3}")
    for r in range(96):
        a(f"v_mov_b32 v{OA + r}, 0")
    a("s_mov_b32 s48, 0")

    stamp(a)
    a.label("L1_kv_loop")
    a("s_barrier")
    for q4 in range(4):
        a(f"v_add_u32 v{cK + q4}, s47, v{aK + q4}")
    a(f"v_add_u32 v{cE}, s47, v{aVE}")
    a(f"v_add_u32 v{cO}, s47, v{aVO}")
    for s in range(12):
        a(f"ds_read_b128 {vr(AF + 4 * s, 4)}, v{cK + (s & 3)} offset:{128 * (s >> 2)}")
    sacc = vr(SA, 16)
    for s in range(12):
        a(f"s_waitcnt lgkmcnt({11 - s})")
        c = "0" if s == 0 else sacc
        a(f"v_mfma_f32_32x32x16_bf16 {sacc}, {vr(AF + 4 * s, 4)}, {vr(QF + 4 * s, 4)}, {c}")
    vitems = []
    for f in range(12):
        s, t = f // 6, f % 6
        fr = AF + 4 * f
        areg = cE if t % 2 == 0 else cO
        reads = []
        for half in range(2):
            off = 12288 + (16 * s + 8 * half) * 384 + 128 * (t >> 1)
            reads.append(f"ds_read_b64_tr_b16 {vr(fr + 2 * half, 2)}, v{areg} offset:{off}")
        acc = vr(OA + 16 * t, 16)
        m = f"v_mfma_f32_32x32x16_bf16 {acc}, {vr(fr, 4)}, {vr(PF + 4 * s, 4)}, {acc}"
        vitems.append((reads, m))
    for f in range(6):
        for r in vitems[f][0]:
            a(r)
    a("s_nop 3")
    a(f"v_max3_f32 v{vT0}, v{SA}, v{SA + 1}, v{SA + 2}")
    a(f"v_max3_f32 v{vT1}, v{SA + 3}, v{SA + 4}, v{SA + 5}")
    a(f"v_max3_f32 v{vT0}, v{vT0}, v{SA + 6}, v{SA + 7}")
    a(f"v_max3_f32 v{vT1}, v{vT1}, v{SA + 8}, v{SA + 9}")
    a(f"v_max3_f32 v{vT0}, v{vT0}, v{SA + 10}, v{SA + 11}")
    a(f"v_max3_f32 v{vT1}, v{vT1}, v{SA + 12}, v{SA + 13}")
    a(f"v_max3_f32 v{vT0}, v{vT0}, v{SA + 14}, v{SA + 15}")
    a(f"v_max3_f32 v{vT0}, v{vT0}, v{vT1}, v{vM}")
    a(f"v_mov_b32 v{vT1}, v{vT0}")
    a("s_nop 1")
    a(f"v_permlane32_swap_b32 v{vT0}, v{vT1}")
    a("s_nop 1")
    a(f"v_max_f32 v{vT0}, v{vT0}, v{vT1}")
    a(f"v_sub_f32 v{vT1}, v{vM}, v{vT0}")
    a(f"v_mul_f32 v{vT1}, s49, v{vT1}")
    a(f"v_exp_f32 v{vAl}, v{vT1}")
    a(f"v_mov_b32 v{vM}, v{vT0}")
    a(f"v_mul_f32 v{vMC}, s49, v{vT0}")
    a(f"v_mov_b32 v{vAl + 1}, v{vAl}")
    for r in range(16):
        a(f"v_fma_f32 v{SA + r}, v{SA + r}, s49, -v{vMC}")
    for r in range(16):
        a(f"v_exp_f32 v{SA + r}, v{SA + r}")
    for r in range(48):
        a(f"v_pk_mul_f32 {vr(OA + 2 * r, 2)}, {vr(OA + 2 * r, 2)}, {vr(vAl, 2)}")
    a(f"v_add_f32 v{vPS}, v{SA}, v{SA + 1}")
    a(f"v_add_f32 v{vT0}, v{SA + 2}, v{SA + 3}")
    for r in range(4, 16, 2):
        a(f"v_add_f32 v{vPS}, v{vPS}, v{SA + r}")
        a(f"v_add_f32 v{vT0}, v{vT0}, v{SA + r + 1}")
    a(f"v_add_f32 v{vPS}, v{vPS}, v{vT0}")
    a(f"v_fma_f32 v{vL}, v{vL}, v{vAl}, v{vPS}")
    for k in range(8):
        a(f"v_cvt_pk_bf16_f32 v{PF + k}, v{SA + 2 * k}, v{SA + 2 * k + 1}")
    a("s_nop 1")
    for f in range(12):
        if f + 6 < 12:
            for r in vitems[f + 6][0]:
                a(r)
        last = min(f + 6, 11)
        a(f"s_waitcnt lgkmcnt({2 * (last - f)})")
        a(vitems[f][1])
    a("s_mov_b32 s46, s47")
    a("s_mov_b32 s47, s52")
    a("s_mov_b32 s52, s53")
    a("s_mov_b32 s53, s46")
    a("s_add_u32 s48, s48, 1")
    a(f"s_cmp_lt_u32 s48, {NKV}")
    a("s_cbranch_scc1 L1_kv_loop")

    stamp(a)
    a(f"v_mov_b32 v{vT1}, v{vL}")
    a("s_nop 1")
    a(f"v_permlane32_swap_b32 v{vL}, v{vT1}")
    a("s_nop 1")
    a(f"v_add_f32 v{vL}, v{vL}, v{vT1}")
    a(f"v_rcp_f32 v{vAl}, v{vL}")
    a("s_nop 7")
    a(f"v_mov_b32 v{vAl + 1}, v{vAl}")
    for r in range(48):
        a(f"v_pk_mul_f32 {vr(OA + 2 * r, 2)}, {vr(OA + 2 * r, 2)}, {vr(vAl, 2)}")
    for t in range(6):
        for g2 in range(2):
            fq = QF + 4 * (2 * t + g2)
            src = OA + 16 * t + 8 * g2
            for k in range(4):
                a(f"v_cvt_pk_bf16_f32 v{fq + k}, v{src + 2 * k}, v{src + 2 * k + 1}")
    a("s_nop 1")
    for ks in range(12):
        fq = QF + 4 * ks
        a(f"v_permlane32_swap_b32 v{fq}, v{fq + 2}")
        a(f"v_permlane32_swap_b32 v{fq + 1}, v{fq + 3}")
    a("s_nop 1")
    a("s_mov_b32 s45, 4096")
    a("s_mov_b32 s46, 8192")
    for ks in range(12):
        fq = QF + 4 * ks
        so = ["0", "s45", "s46"][ks >> 2]
        a(f"buffer_store_dwordx4 {vr(fq, 4)}, v{vOO}, s[24:27], {so} offen offset:{1024 * (ks & 3)} {P_OST}")
    if STAMP:
        a("s_waitcnt vmcnt(0)")
        stamp(a)
        a("s_waitcnt lgkmcnt(0)")
        a(f"s_cmp_eq_u32 s2, {STAMPWG}")
        a("s_cbranch_scc0 L1_end")
        a("s_cmp_eq_u32 s40, 0")
        a("s_cbranch_scc0 L1_end")
        a("s_cmp_eq_u32 s3, 0")
        a("s_cbranch_scc0 L1_end")
        srd(a, 50, 256, 56)
        a("v_mov_b32 v1, 0")
        for k in range(_stamp_n[0]):
            a(f"s_sub_u32 s55, s{60 + 2 * k}, s60")
            a("v_mov_b32 v3, s55")
            a(f"buffer_store_dword v3, v1, s[56:59], 0 offen offset:{4 * k}")
    a.label("L1_end")
    a("s_endpgm")


K2 = "oproj_kernel"
S2 = 16384
NS2 = 8
NST2 = 24
OD2 = 7
PART_OFF = 18874368
PART_SLICE = 3932160


def gen_oproj(a):
    a.raw(f".globl {K2}")
    a.raw(".p2align 8")
    a.raw(f".type {K2},@function")
    a.label(K2)
    a("s_cmp_ge_u32 s2, 240")
    a("s_cbranch_scc1 L2_end")
    a("s_load_dwordx2 s[28:29], s[0:1], 32")
    a("s_load_dwordx2 s[30:31], s[0:1], 56")
    a("s_load_dwordx2 s[50:51], s[0:1], 48")
    a("s_load_dwordx2 s[34:35], s[0:1], 40")
    _stamp_n[0] = 0
    stamp(a, STAMP2)
    a("v_lshrrev_b32 v1, 6, v0")
    a("v_and_b32 v2, 63, v0")
    a("v_readfirstlane_b32 s40, v1")
    a("s_and_b32 s38, s2, 3")
    a("s_lshr_b32 s39, s2, 3")
    a("s_bfe_u32 s41, s2, 0x10002")
    a("s_mul_i32 s41, s41, 30")
    a("s_add_u32 s39, s39, s41")
    a("s_mul_i32 s41, s39, 0xcccd")
    a("s_lshr_b32 s41, s41, 18")
    a("s_mul_i32 s42, s41, 5")
    a("s_sub_u32 s42, s39, s42")
    a("s_waitcnt lgkmcnt(0)")
    srd(a, 28, 7864320, 8)
    srd(a, 30, 18874368, 12)
    a(f"s_add_u32 s32, s30, {PART_OFF}")
    a("s_addc_u32 s33, s31, 0")
    srd(a, 32, 4 * PART_SLICE, 16)
    srd(a, 50, 256, 20)
    srd(a, 34, 1966080, 24)
    a("s_cmp_ge_u32 s40, 4")
    a("s_cbranch_scc0 L2_compute")
    a("v_lshrrev_b32 v3, 4, v2")
    a("v_and_b32 v4, 15, v2")
    a("v_lshlrev_b32 v5, 2, v3")
    a("v_xor_b32 v4, v4, v5")
    a("v_lshlrev_b32 v4, 4, v4")
    a("v_mul_u32_u24 v5, 0x500, v3")
    a("v_add_u32 v10, v4, v5")
    a("s_sub_u32 s43, s40, 4")
    a("s_mul_i32 s45, s38, 1966080")
    a("s_lshl_b32 s46, s42, 8")
    a("s_add_u32 s45, s45, s46")
    a("s_mul_i32 s46, s43, 40960")
    a("s_add_u32 s45, s45, s46")
    a("s_lshl_b32 s44, s43, 13")

    def issue(i):
        a(f"s_add_u32 m0, s44, {(i % NS2) * S2}")
        a("s_nop 0")
        for jj in range(8):
            a(f"buffer_load_dwordx4 v10, s[8:11], s45 offen {P_WO} lds")
            a("s_add_u32 m0, m0, 0x400")
            a(f"s_add_u32 s45, s45, {5120 if jj < 7 else 5120 + 40960}")

    for i in range(6):
        issue(i)
    nissued = 6
    for n in range(NST2 // 2):
        a(f"s_waitcnt vmcnt({8 * (nissued - 2 * n - 2)})")
        a("s_barrier")
        for _ in range(2):
            if nissued < NST2:
                issue(nissued)
                nissued += 1
    a("s_endpgm")
    OB = [16 + 16 * i for i in range(8)]
    AC = 144
    AF = 208
    aW = 10
    vXO, vPO = 14, 15
    a.label("L2_compute")
    a("v_and_b32 v3, 15, v2")
    a("v_lshrrev_b32 v4, 5, v2")
    a("v_and_b32 v5, 31, v2")
    a("v_lshrrev_b32 v6, 4, v2")
    a("v_and_b32 v6, 1, v6")
    a("v_lshrrev_b32 v7, 2, v3")
    a("v_and_b32 v8, 3, v3")
    a("v_lshlrev_b32 v8, 3, v8")
    a("v_lshl_add_u32 v8, v6, 5, v8")
    a("v_lshl_add_u32 v9, v4, 3, v7")
    a("v_lshl_add_u32 v8, v9, 8, v8")
    for t in range(4):
        a(f"v_xor_b32 v9, {t}, v7")
        a(f"v_lshl_add_u32 v{aW + t}, v9, 6, v8")
    a("s_lshl_b32 s45, s41, 7")
    a("s_lshl_b32 s46, s40, 5")
    a("s_add_u32 s45, s45, s46")
    a("v_add_u32 v9, s45, v5")
    a("s_lshr_b32 s46, s45, 5")
    a("s_mul_i32 s46, s46, 384")
    a("s_mul_i32 s47, s38, 96")
    a("s_add_u32 s46, s46, s47")
    a("s_lshl_b32 s48, s46, 10")
    a(f"v_lshlrev_b32 v{vXO}, 4, v2")
    if FUSERED:
        a("s_lshl_b32 s47, s39, 2")
        a("s_add_u32 s47, s47, s40")
        a("s_lshl_b32 s47, s47, 16")
        a(f"v_lshlrev_b32 v{vPO}, 4, v2")
        a(f"v_add_u32 v{vPO}, s47, v{vPO}")
        a("v_mul_u32_u24 v7, 0x500, v9")
        a("v_lshl_add_u32 v7, v4, 4, v7")
        a("s_lshl_b32 s46, s42, 8")
        a("s_lshl_b32 s47, s38, 6")
        a("s_add_u32 s46, s46, s47")
        a("v_add_u32 v7, s46, v7")
    else:
        a(f"s_mul_i32 s46, s38, {PART_SLICE}")
        a("s_lshl_b32 s47, s39, 2")
        a("s_add_u32 s47, s47, s40")
        a("s_lshl_b32 s47, s47, 14")
        a("s_add_u32 s46, s46, s47")
        a(f"v_lshlrev_b32 v{vPO}, 4, v2")
        a(f"v_add_u32 v{vPO}, s46, v{vPO}")
    for t in range(4):
        a(f"v_add_u32 v{3 + t}, 0x10000, v{aW + t}")

    def oloads(i):
        for s in range(4):
            a(f"buffer_load_dwordx4 {vr(OB[i % 8] + 4 * s, 4)}, v{vXO}, s[12:15], s48 offen offset:{1024 * s} {P_OLD}")
        a("s_add_u32 s48, s48, 4096")

    if PTOUCH:
        a(f"buffer_load_dword v8, v{vPO}, s[16:19], 0 offen")
    for i in range(OD2):
        oloads(i)
    fcount = 0
    for i in range(NST2):
        sl = i % NS2
        abase = aW if sl < 4 else 3
        slot = (sl % 4) * S2
        if i % 2 == 0:
            a("s_barrier")
            stamp(a, STAMP2)
        if i + OD2 < NST2:
            oloads(i + OD2)
        a(f"s_waitcnt vmcnt({4 * (min(i + OD2, NST2 - 1) - i)})")
        items = []
        for s in range(4):
            for t in range(4):
                fr = AF + 4 * (fcount % 12)
                fcount += 1
                reads = []
                for half in range(2):
                    off = slot + (16 * s + 4 * half) * 256
                    reads.append(f"ds_read_b64_tr_b16 {vr(fr + 2 * half, 2)}, v{abase + t} offset:{off}")
                acc = vr(AC + 16 * t, 16)
                c = "0" if (i == 0 and s == 0) else acc
                m = f"v_mfma_f32_32x32x16_bf16 {acc}, {vr(fr, 4)}, {vr(OB[i % 8] + 4 * s, 4)}, {c}"
                items.append((reads, m))
        rolling(a, items, 6)
    a("s_nop 15")
    if FUSERED:
        a("s_lshl_b32 s46, s38, 12")
        for t in range(4):
            a(f"s_add_u32 s45, s46, {16384 * t}")
            for q in range(4):
                a(f"buffer_store_dwordx4 {vr(AC + 16 * t + 4 * q, 4)}, v{vPO}, s[16:19], s45 offen offset:{1024 * q} sc1")
        a("s_waitcnt vmcnt(0)")
        a("s_barrier")
        a("s_cmp_eq_u32 s40, 0")
        a("s_cbranch_scc0 L2_wait")
        a("s_mov_b64 exec, 1")
        a("s_lshl_b32 s45, s39, 2")
        a("v_mov_b32 v16, s45")
        a("v_mov_b32 v17, 1")
        a("buffer_atomic_add v17, v16, s[20:23], 0 offen sc1")
        a("s_mov_b32 s46, 0")
        a.label("L2_poll")
        a("buffer_load_dword v18, v16, s[20:23], 0 offen sc1")
        a("s_waitcnt vmcnt(0)")
        a("v_readfirstlane_b32 s45, v18")
        a("s_add_u32 s46, s46, 1")
        a("s_cmp_ge_u32 s45, 4")
        a("s_cbranch_scc1 L2_polldone")
        a("s_sleep 1")
        a("s_cmp_lt_u32 s46, 0x400000")
        a("s_cbranch_scc1 L2_poll")
        a.label("L2_polldone")
        a("s_mov_b64 exec, -1")
        a.label("L2_wait")
        a("s_barrier")
        a("s_lshl_b32 s46, s38, 14")
        for src in range(4):
            a(f"s_add_u32 s45, s46, {4096 * src}")
            for q in range(4):
                a(f"buffer_load_dwordx4 {vr(16 + 16 * src + 4 * q, 4)}, v{vPO}, s[16:19], s45 offen offset:{1024 * q} sc1")
        for src in range(1, 4):
            a(f"s_waitcnt vmcnt({4 * (3 - src)})")
            for e in range(16):
                a(f"v_add_f32 v{16 + e}, v{16 + e}, v{16 + 16 * src + e}")
        for e in range(8):
            a(f"v_cvt_pk_bf16_f32 v{32 + e}, v{16 + 2 * e}, v{17 + 2 * e}")
        a("s_nop 1")
        for g2 in range(2):
            a(f"v_permlane32_swap_b32 v{32 + 4 * g2}, v{34 + 4 * g2}")
            a(f"v_permlane32_swap_b32 v{33 + 4 * g2}, v{35 + 4 * g2}")
        a("s_nop 1")
        for g2 in range(2):
            a(f"buffer_store_dwordx4 {vr(32 + 4 * g2, 4)}, v7, s[24:27], 0 offen offset:{32 * g2}")
    else:
      for t in range(4):
        a(f"s_mov_b32 s45, {4096 * t}")
        for q in range(4):
            a(f"buffer_store_dwordx4 {vr(AC + 16 * t + 4 * q, 4)}, v{vPO}, s[16:19], s45 offen offset:{1024 * q} {P_PART}")
    if STAMP2:
        stamp(a, STAMP2)
        a("s_waitcnt vmcnt(0)")
        stamp(a, STAMP2)
        a("s_waitcnt lgkmcnt(0)")
        a(f"s_cmp_eq_u32 s2, {STAMPWG}")
        a("s_cbranch_scc0 L2_end")
        a("s_cmp_eq_u32 s40, 0")
        a("s_cbranch_scc0 L2_end")
        srd(a, 50, 256, 56)
        a("v_mov_b32 v1, 0")
        for k in range(_stamp_n[0]):
            a(f"s_sub_u32 s55, s{60 + 2 * k}, s60")
            a("v_mov_b32 v3, s55")
            a(f"buffer_store_dword v3, v1, s[56:59], 0 offen offset:{4 * k}")
    a.label("L2_end")
    a("s_endpgm")


K3 = "reduce_kernel"


def gen_reduce(a):
    a.raw(f".globl {K3}")
    a.raw(".p2align 8")
    a.raw(f".type {K3},@function")
    a.label(K3)
    a("s_cmp_ge_u32 s2, 960")
    a("s_cbranch_scc1 L3_end")
    a("s_load_dwordx2 s[28:29], s[0:1], 40")
    a("s_load_dwordx2 s[30:31], s[0:1], 56")
    a("s_lshl_b32 s3, s2, 8")
    a("v_add_u32 v1, s3, v0")
    a("v_lshlrev_b32 v2, 4, v1")
    a("s_lshr_b32 s39, s2, 4")
    a("s_mul_i32 s41, s39, 0xcccd")
    a("s_lshr_b32 s41, s41, 18")
    a("s_mul_i32 s42, s41, 5")
    a("s_sub_u32 s42, s39, s42")
    a("s_lshr_b32 s43, s2, 2")
    a("s_and_b32 s43, s43, 3")
    a("s_and_b32 s44, s2, 3")
    a("s_lshl_b32 s45, s41, 7")
    a("s_lshl_b32 s46, s43, 5")
    a("s_add_u32 s45, s45, s46")
    a("s_lshl_b32 s46, s42, 7")
    a("s_lshl_b32 s47, s44, 5")
    a("s_add_u32 s46, s46, s47")
    a("v_and_b32 v3, 31, v0")
    a("v_add_u32 v3, s45, v3")
    a("v_mul_u32_u24 v3, 0x500, v3")
    a("v_lshrrev_b32 v4, 6, v0")
    a("v_lshlrev_b32 v4, 3, v4")
    a("v_bfe_u32 v5, v0, 5, 1")
    a("v_lshl_add_u32 v4, v5, 2, v4")
    a("v_add_u32 v4, s46, v4")
    a("v_lshl_add_u32 v3, v4, 1, v3")
    a("s_waitcnt lgkmcnt(0)")
    srd(a, 28, 1966080, 8)
    a(f"s_add_u32 s32, s30, {PART_OFF}")
    a("s_addc_u32 s33, s31, 0")
    srd(a, 32, 4 * PART_SLICE, 12)
    for k in range(1, 4):
        a(f"s_mov_b32 s{36 + k}, {k * PART_SLICE}")
    for k in range(4):
        so = "0" if k == 0 else f"s{36 + k}"
        a(f"buffer_load_dwordx4 {vr(8 + 4 * k, 4)}, v2, s[12:15], {so} offen {P_RED}")
    a("s_waitcnt vmcnt(2)")
    for e in range(4):
        a(f"v_add_f32 v{8 + e}, v{8 + e}, v{12 + e}")
    a("s_waitcnt vmcnt(0)")
    for e in range(4):
        a(f"v_add_f32 v{16 + e}, v{16 + e}, v{20 + e}")
    for e in range(4):
        a(f"v_add_f32 v{8 + e}, v{8 + e}, v{16 + e}")
    for e in range(2):
        a(f"v_cvt_pk_bf16_f32 v{6 + e}, v{8 + 2 * e}, v{9 + 2 * e}")
    a("buffer_store_dwordx2 v[6:7], v3, s[8:11], 0 offen")
    a.label("L3_end")
    a("s_endpgm")


def kd(name, vgpr, sgpr=102):
    acc = (vgpr + 3) // 4 * 4
    return f""".p2align 6
.amdhsa_kernel {name}
  .amdhsa_next_free_vgpr {vgpr}
  .amdhsa_next_free_sgpr {sgpr}
  .amdhsa_accum_offset {acc}
  .amdhsa_group_segment_fixed_size 0
  .amdhsa_kernarg_size 64
  .amdhsa_user_sgpr_count 2
  .amdhsa_user_sgpr_kernarg_segment_ptr 1
  .amdhsa_system_sgpr_workgroup_id_x 1
.end_amdhsa_kernel
"""


def main():
    a = Asm()
    out = HEADER
    out += f"; @launch kernel={MAIN} grid=(256,1,1) block=(512,1,1) lds={SLOT * 6}\n"
    out += f"; @launch kernel={K2} grid=(240,1,1) block=(384,1,1) lds={S2 * NS2}\n"
    if not FUSERED:
        out += f"; @launch kernel={K3} grid=(960,1,1) block=(256,1,1) lds=0\n"
    out += '.amdgcn_target "amdgcn-amd-amdhsa--gfx950"\n.text\n'
    gen_attn(a)
    gen_oproj(a)
    if not FUSERED:
        gen_reduce(a)
    out += a.text()
    out += '.section .rodata,"a"\n'
    out += kd(MAIN, 256)
    out += kd(K2, 256)
    if not FUSERED:
        out += kd(K3, 24)
    open(OUT, "w").write(out)
    print("wrote", OUT, len(out), "bytes")


if __name__ == "__main__":
    main()
```

```python
import math
import struct
import sys
import os
NOCOMP=int(os.environ.get("NOCOMP","0"))
NOLOAD=int(os.environ.get("NOLOAD","0"))
KVPOL=os.environ.get("KVPOL","nt")
NTOUCH=int(os.environ.get("NTOUCH","0"))
STAMP=int(os.environ.get("STAMP","0"))
MAP=int(os.environ.get("MAP","1"))
ROT=int(os.environ.get("ROT","1"))
STAMPWG=int(os.environ.get("STAMPWG","0"))
STAMP2=int(os.environ.get("STAMP2","0"))
FUSERED=int(os.environ.get("FUSERED","0"))
P_PART=os.environ.get("P_PART","nt")
P_RED=os.environ.get("P_RED","nt")
P_OST=os.environ.get("P_OST","")
P_WO=os.environ.get("P_WO","")
P_OLD=os.environ.get("P_OLD","nt")
P_WQ=os.environ.get("P_WQ","")
P_X=os.environ.get("P_X","")
WOPF=int(os.environ.get("WOPF","-2"))
STAG=int(os.environ.get("STAG","0"))
LSTAMP=int(os.environ.get("LSTAMP","0"))
TLBT=int(os.environ.get("TLBT","0"))
PTOUCH=int(os.environ.get("PTOUCH","0"))
LLOOP=int(os.environ.get("LLOOP","1"))
APF=int(os.environ.get("APF","4"))

OUT = os.environ.get("OUT", "standalone__mha_block_cached__near_ridge.s")

HEADER = open("standalone__mha_block_cached__near_ridge.s.ref").read().split("; Override launch geometry")[0]

MAIN = "standalone__mha_block_cached__near_ridge_kernel"


def f32bits(x):
    return struct.unpack("<I", struct.pack("<f", x))[0]


class Asm:
    def __init__(self):
        self.lines = []

    def __call__(self, s):
        self.lines.append("    " + s)

    def label(self, l):
        self.lines.append(l + ":")

    def raw(self, s):
        self.lines.append(s)

    def text(self):
        return "\n".join(self.lines) + "\n"


def vr(a, n):
    return f"v[{a}:{a + n - 1}]"


def srd(a, base, nbytes, sreg):
    a(f"s_mov_b32 s{sreg}, s{base}")
    a(f"s_and_b32 s{sreg + 1}, s{base + 1}, 0xffff")
    a(f"s_mov_b32 s{sreg + 2}, {nbytes}")
    a(f"s_mov_b32 s{sreg + 3}, 0x00020000")


_stamp_n = [0]


def stamp(a, on=None):
    if not (STAMP if on is None else on):
        return
    k = _stamp_n[0]
    _stamp_n[0] += 1
    a(f"s_memtime s[{60 + 2 * k}:{61 + 2 * k}]")


def rolling(a, items, window, nslots_reads=None):
    n = len(items)
    nr = [len(it[0]) for it in items]
    for f in range(min(window, n)):
        for r in items[f][0]:
            a(r)
    for f in range(n):
        if f + window < n:
            for r in items[f + window][0]:
                a(r)
        last = min(f + window, n - 1)
        outstanding = sum(nr[f + 1:last + 1])
        assert outstanding <= 15
        a(f"s_waitcnt lgkmcnt({outstanding})")
        a(items[f][1])


SLOT = 24576
NW = 10
NKV = int(os.environ.get("NKV", "32"))
NST = NW + NKV
REGST = 0
if STAG:
    ARING = [3, 4, 5]
    BRING = [2, 0, 1]
    NSTEP = NST + NW
else:
    ARING = [2, 3, 0]
    BRING = [4, 5, 1]
    NSTEP = NST


def attn_schedule(L):
    sched = {n: [] for n in range(-1, NSTEP)}
    ring = {"A": ARING, "B": BRING}

    def both(n, kind, idx, slot):
        sched[n] += [(kind, idx, slot, 0), (kind, idx, slot, 1)]

    if not STAG:
        for i in range(2):
            sched[-1].append(("W", i, i, L, True))
        if L == 0:
            for n in range(0, 8):
                both(n, "W", n + 2, (n + 2) % 4)
        else:
            BPF = int(os.environ.get("BPF", "5"))
            dma = {7: [("A", 0)], 8: [("A", 1)], 9: [("A", 2)], 10: [("B", 2)]}
            if BPF < 0:
                dma[-1] = [("B", 0), ("B", 1)]
            else:
                dma[BPF] = [("B", 0)]
                dma[BPF + 1] = [("B", 1)]
            for n, l in dma.items():
                for (u, t) in l:
                    if t < NKV:
                        both(n, u, t, ring[u][t % 3])
        for t in range(1, NKV):
            if t + 2 < NKV:
                sched[NW + t].append(("A", t + 2, ARING[(t + 2) % 3], L))
                sched[NW + t].append(("B", t + 2, BRING[(t + 2) % 3], L))
        return sched
    if L == 0:
        both(-1, "W", 0, 0)
        both(-1, "W", 1, 1)
        for n in range(0, 2 * NW - 2):
            both(n, "W", n + 2, (n + 2) % 3)
    else:
        for t in range(3):
            both(APF + t, "A", t, ARING[t])
            both(2 * NW - 2 + t, "B", t, BRING[t])
    for t in range(1, NKV - 2):
        n = NW + t
        if n < 2 * NW:
            if L == 1:
                both(n, "A", t + 2, ARING[(t + 2) % 3])
        else:
            sched[n].append(("A", t + 2, ARING[(t + 2) % 3], L))
        sched[2 * NW + t].append(("B", t + 2, BRING[(t + 2) % 3], L))
    return sched


def step_needs(n):
    if not STAG:
        return [("W", n)] if n < NW else [("A", n - NW), ("B", n - NW)]
    need = []
    if n < 2 * NW:
        need.append(("W", n))
    if NW <= n < NW + NKV:
        need.append(("A", n - NW))
    if n >= 2 * NW:
        need.append(("B", n - 2 * NW))
    return need


def gen_attn(a):
    a.raw(f".globl {MAIN}")
    a.raw(".p2align 8")
    a.raw(f".type {MAIN},@function")
    a.label(MAIN)
    a("s_cmp_ge_u32 s2, 256")
    a("s_cbranch_scc1 L1_end")
    a("s_load_dwordx8 s[28:35], s[0:1], 0")
    a("s_load_dwordx2 s[36:37], s[0:1], 56")
    a("s_load_dwordx2 s[50:51], s[0:1], 48")
    a("s_load_dwordx2 s[92:93], s[0:1], 32")
    stamp(a, STAMP or LSTAMP)
    a("v_lshrrev_b32 v1, 6, v0")
    a("v_and_b32 v2, 63, v0")
    a("v_readfirstlane_b32 s40, v1")
    a("s_and_b32 s39, s2, 31")
    a("s_lshr_b32 s38, s2, 5")
    a("s_lshr_b32 s3, s40, 2")
    a("s_and_b32 s40, s40, 3")
    a("s_lshr_b32 s55, s39, 3")
    a("s_mul_i32 s55, s55, 3")
    a("s_add_u32 s55, s55, s38")
    a("s_cmp_ge_u32 s55, 10")
    a("s_cselect_b32 s54, 10, 0")
    a("s_sub_u32 s55, s55, s54")
    if not ROT:
        a("s_mov_b32 s55, 0")
    a("s_waitcnt lgkmcnt(0)")
    stamp(a, LSTAMP)
    srd(a, 28, 1966080, 8)
    srd(a, 30, 201326592, 12)
    srd(a, 32, 201326592, 16)
    srd(a, 34, 7864320, 20)
    srd(a, 36, 18874368, 24)
    srd(a, 92, 7864320, 96)
    a("s_cmp_eq_u32 s40, 3")
    a("s_cbranch_scc0 L1_compute")

    for jj in range(6):
        a(f"v_add_u32 v3, {64 * jj}, v2")
        a("v_mul_u32_u24 v4, 0xaab, v3")
        a("v_lshrrev_b32 v4, 16, v4")
        a("v_mul_u32_u24 v5, 24, v4")
        a("v_sub_u32 v5, v3, v5")
        a("v_lshrrev_b32 v6, 1, v4")
        a("v_and_b32 v7, 7, v6")
        a("v_xor_b32 v7, v7, v5")
        a("v_lshlrev_b32 v7, 4, v7")
        a("v_mul_u32_u24 v8, 0x180, v4")
        a(f"v_add_u32 v{10 + jj}, v7, v8")
        if jj < 3:
            a("v_and_b32 v7, 1, v6")
            a("v_lshlrev_b32 v7, 2, v7")
            a("v_xor_b32 v7, v7, v5")
            a("v_lshlrev_b32 v7, 4, v7")
            a(f"v_add_u32 v{16 + jj}, v7, v8")
            a("v_mul_u32_u24 v8, 0x3000, v4")
            a(f"v_add_u32 v{19 + jj}, v7, v8")
    a("s_lshl_b32 s41, s38, 5")
    a("s_add_u32 s41, s41, s39")
    a("s_mul_i32 s41, s41, 393216")
    a(f"s_add_u32 s42, s41, {256 * 393216}")
    a("s_mul_i32 s43, s39, 384")
    a("s_mul_i32 s45, s3, 12288")
    a("s_mul_i32 s47, s55, 786432")
    a("v_lshlrev_b32 v22, 4, v2")
    a("v_add_u32 v22, s45, v22")
    a("s_cmp_eq_u32 s3, 0")
    a("s_cbranch_scc0 L1_loader1")
    for L in range(2):
        sched = attn_schedule(L)
        if L == 1:
            a.label("L1_loader1")
        issued = []
        state = {"out": 0}

        def waitfor(need):
            last = max(i for i, x in enumerate(issued) if x in need)
            cnt = 12 * (len(issued) - 1 - last)
            if cnt < state["out"]:
                a(f"s_waitcnt vmcnt({cnt})")
                state["out"] = cnt

        def kvsrc(u, idx, emit, hh):
            base = "s41" if u == "A" else "s42"
            a(f"s_add_u32 s46, {base}, {idx * 12288}")
            j = 0
            if hh == 0:
                for half in range(2):
                    for jj in range(6):
                        emit(j, 10 + jj, "s[12:15]")
                        j += 1
                        a("s_add_u32 s46, s46, 6144" if jj == 5 else "s_nop 0")
            else:
                for g in range(4):
                    for jj in range(3):
                        emit(j, 16 + jj, "s[16:19]")
                        j += 1
                        a("s_add_u32 s46, s46, 3072" if jj == 2 else "s_nop 0")

        def rbase(u, t):
            return 32 + 48 * ((0 if u == "A" else 1) + 2 * (t & 1))

        def issue(ev):
            if NOLOAD:
                return
            kind = ev[0]
            if kind == "X":
                _, u, t, slot = ev
                waitfor([("R" + u, t)])
                a(f"v_add_u32 v23, {slot * SLOT}, v22")
                rb = rbase(u, t)
                for j in range(12):
                    a(f"ds_write_b128 v23, {vr(rb + 4 * j, 4)} offset:{1024 * j}")
                return
            if state["out"] + 12 > 63:
                state["out"] = 48
                a("s_waitcnt vmcnt(48)")
            state["out"] += 12
            if kind == "R":
                _, u, t = ev
                rb = rbase(u, t)
                a("s_waitcnt lgkmcnt(0)")
                kvsrc(u, t, lambda j, v, sr: a(f"buffer_load_dwordx4 {vr(rb + 4 * j, 4)}, v{v}, {sr}, s46 offen {KVPOL}"), L)
                issued.append(("R" + u, t))
                return
            idx, slot, hh = ev[1:4]
            a(f"s_mov_b32 m0, {slot * SLOT + hh * 12288}")
            if kind == "W":
                a("s_add_u32 s46, s43, s47")
                if hh == 1:
                    a("s_add_u32 s46, s46, 393216")
                if hh == 1 or len(ev) > 4:
                    a("s_add_u32 s47, s47, 786432")
                    a("s_cmp_eq_u32 s47, 7864320")
                    a("s_cselect_b32 s47, 0, s47")
                for g in range(4):
                    for jj in range(3):
                        a(f"buffer_load_dwordx4 v{19 + jj}, s[20:23], s46 offen {P_WQ} lds")
                        a("s_add_u32 m0, m0, 0x400")
                        a("s_add_u32 s46, s46, 98304" if jj == 2 else "s_nop 0")
            else:
                def em(j, v, sr):
                    a(f"buffer_load_dwordx4 v{v}, {sr}, s46 offen {KVPOL} lds")
                    a("s_add_u32 m0, m0, 0x400")
                kvsrc(kind, idx, em, hh)
            issued.append((kind, idx))

        if L == 0:
            stamp(a, LSTAMP)
        for it in sched[-1]:
            issue(it)
        if L == 0:
            stamp(a, LSTAMP)
        T0, T1 = 3, NKV - 3
        useloop = LLOOP and not STAG and not NOLOAD and NKV == 32
        for n in range(NSTEP):
            t = n - NW
            if useloop and T0 <= t <= T1:
                if t == T0:
                    for k in range(3):
                        a(f"s_mov_b32 s{72 + k}, {ARING[(T0 + 2 + k) % 3] * SLOT + L * 12288}")
                        a(f"s_mov_b32 s{76 + k}, {BRING[(T0 + 2 + k) % 3] * SLOT + L * 12288}")
                    a(f"s_mov_b32 s75, {(T0 + 2) * 12288}")
                    a(f"s_mov_b32 s79, {T1 - T0 + 1}")
                    a.label(f"L1_ldloop{L}")
                    a("s_waitcnt vmcnt(24)")
                    a("s_barrier")
                    for u, sb in (("A", 72), ("B", 76)):
                        a(f"s_mov_b32 m0, s{sb}")
                        base = "s41" if u == "A" else "s42"
                        a(f"s_add_u32 s46, {base}, s75")
                        if L == 0:
                            for half in range(2):
                                for jj in range(6):
                                    a(f"buffer_load_dwordx4 v{10 + jj}, s[12:15], s46 offen {KVPOL} lds")
                                    a("s_add_u32 m0, m0, 0x400")
                                    a("s_add_u32 s46, s46, 6144" if jj == 5 else "s_nop 0")
                        else:
                            for g in range(4):
                                for jj in range(3):
                                    a(f"buffer_load_dwordx4 v{16 + jj}, s[16:19], s46 offen {KVPOL} lds")
                                    a("s_add_u32 m0, m0, 0x400")
                                    a("s_add_u32 s46, s46, 3072" if jj == 2 else "s_nop 0")
                        a(f"s_mov_b32 s46, s{sb}")
                        a(f"s_mov_b32 s{sb}, s{sb + 1}")
                        a(f"s_mov_b32 s{sb + 1}, s{sb + 2}")
                        a(f"s_mov_b32 s{sb + 2}, s46")
                    a("s_add_u32 s75, s75, 12288")
                    a("s_sub_u32 s79, s79, 1")
                    a("s_cmp_lg_u32 s79, 0")
                    a(f"s_cbranch_scc1 L1_ldloop{L}")
                assert sched[n] == [("A", t + 2, ARING[(t + 2) % 3], L), ("B", t + 2, BRING[(t + 2) % 3], L)]
                assert issued[-4:] == [("A", t), ("B", t), ("A", t + 1), ("B", t + 1)], (L, t, issued[-4:])
                issued += [("A", t + 2), ("B", t + 2)]
                state["out"] = 48
                continue
            need = [x for x in step_needs(n) if x in issued]
            if not NOLOAD:
                if need:
                    waitfor(need)
                a("s_waitcnt lgkmcnt(0)")
            if L == 0 and n < 4:
                stamp(a, LSTAMP)
            a("s_barrier")
            if WOPF and L == 1 and n == NSTEP + WOPF:
                a("v_lshlrev_b32 v24, 7, v2")
                a("s_mul_i32 s46, s2, 30720")
                for k in range(4):
                    a(f"buffer_load_dword v{25 + k}, v24, s[96:99], s46 offen")
                    a("s_add_u32 s46, s46, 8192")
                a("s_waitcnt vmcnt(0)")
                state["out"] = 0
            for it in sched[n]:
                issue(it)
        if LSTAMP and L == 0:
            a("s_waitcnt lgkmcnt(0)")
            a(f"s_cmp_eq_u32 s2, {STAMPWG}")
            a("s_cbranch_scc0 L1_end")
            srd(a, 50, 256, 56)
            a("v_mov_b32 v1, 0")
            for k in range(_stamp_n[0]):
                a(f"s_sub_u32 s55, s{60 + 2 * k}, s60")
                a("v_mov_b32 v3, s55")
                a(f"buffer_store_dword v3, v1, s[56:59], 0 offen offset:{4 * k}")
        a("s_endpgm")

    QF = 16
    OA = 64
    SA = 160
    PF = 176
    AF = 184
    aWE, aWO, aVE, aVO = 10, 11, 12, 13
    aK = 232
    cE, cO = 236, 237
    cK = 238
    vM, vL, vAl, vMC, vT0, vT1, vPS, vXO, vOO = 242, 243, 244, 246, 247, 248, 249, 250, 251
    a.label("L1_compute")
    if TLBT:
        a(f"s_mov_b32 s45, {TLBT}")
        a("v_mul_lo_u32 v3, v2, s45")
        a("s_lshl_b32 s46, s40, 1")
        a("s_add_u32 s46, s46, s3")
        a(f"s_mul_i32 s46, s46, {64 * TLBT}")
        nt = (7864320 + 6 * 64 * TLBT - 1) // (6 * 64 * TLBT)
        for k in range(nt):
            a(f"buffer_load_dword v{240 + (k & 7)}, v3, s[20:23], s46 offen")
            a(f"s_add_u32 s46, s46, {6 * 64 * TLBT}")
    if NOCOMP:
        for i in range(NSTEP):
            a("s_barrier")
        a("s_endpgm")
    a("v_and_b32 v3, 15, v2")
    a("v_lshrrev_b32 v4, 5, v2")
    a("v_and_b32 v5, 31, v2")
    a("v_lshrrev_b32 v6, 4, v2")
    a("v_and_b32 v6, 1, v6")
    a("v_lshrrev_b32 v7, 2, v3")
    a("v_and_b32 v8, 3, v3")
    a("v_lshlrev_b32 v8, 3, v8")
    a("v_lshl_add_u32 v8, v6, 5, v8")
    a("v_lshrrev_b32 v9, 3, v3")
    a("v_lshlrev_b32 v9, 6, v9")
    a("v_lshl_add_u32 v14, v4, 3, v7")
    a("v_mul_u32_u24 v14, 0x180, v14")
    a("v_add_u32 v14, v14, v8")
    a(f"v_add_u32 v{aWE}, v14, v9")
    a(f"v_xor_b32 v15, 64, v9")
    a(f"v_add_u32 v{aWO}, v14, v15")
    a("v_lshl_add_u32 v14, v4, 2, v7")
    a("v_mul_u32_u24 v14, 0x180, v14")
    a("v_add_u32 v14, v14, v8")
    a(f"v_add_u32 v{aVE}, v14, v9")
    a(f"v_add_u32 v{aVO}, v14, v15")
    a("v_lshrrev_b32 v14, 1, v5")
    a("v_and_b32 v14, 7, v14")
    a("v_mul_u32_u24 v15, 0x180, v5")
    for q4 in range(4):
        a(f"v_add_u32 v9, {2 * q4}, v4")
        a("v_xor_b32 v9, v9, v14")
        a(f"v_lshl_add_u32 v{aK + q4}, v9, 4, v15")
    a("s_lshl_b32 s45, s3, 3")
    a("s_add_u32 s45, s45, s38")
    a("s_mul_i32 s45, s45, 96")
    a("s_lshl_b32 s46, s40, 5")
    a("s_add_u32 s45, s45, s46")
    a("v_add_u32 v14, s45, v5")
    a("v_lshlrev_b32 v15, 4, v4")
    a(f"v_mul_u32_u24 v{vXO}, 0x500, v14")
    a(f"v_add_u32 v{vXO}, v{vXO}, v15")
    a("s_lshr_b32 s46, s45, 5")
    a("s_mul_i32 s46, s46, 384")
    a("s_mul_i32 s47, s39, 12")
    a("s_add_u32 s46, s46, s47")
    a("s_lshl_b32 s46, s46, 10")
    a(f"v_lshlrev_b32 v{vOO}, 4, v2")
    a(f"v_add_u32 v{vOO}, s46, v{vOO}")
    a(f"v_mov_b32 v{vM}, 0xff800000")
    a(f"v_mov_b32 v{vL}, 0")
    cval = (192 ** -0.5) * math.log2(math.e)
    a(f"s_mov_b32 s49, 0x{f32bits(cval):08x}")
    a("s_cmp_eq_u32 s3, 0")
    for k, sr in enumerate((47, 52, 53)):
        a(f"s_mov_b32 s{sr}, {BRING[k] * SLOT}")
        a(f"s_cselect_b32 s{sr}, {ARING[k] * SLOT}, s{sr}")

    XB = [16, 32, 48, 160]
    XD = 3

    a("s_lshl_b32 s54, s55, 7")

    def xloads(i):
        for s in range(4):
            a(f"buffer_load_dwordx4 {vr(XB[i % 4] + 4 * s, 4)}, v{vXO}, s[8:11], s54 offen offset:{32 * s} {P_X}")
        a("s_add_u32 s54, s54, 128")
        a("s_cmp_eq_u32 s54, 1280")
        a("s_cselect_b32 s54, 0, s54")

    for i in range(XD):
        xloads(i)
    if STAG:
        a(f"s_mul_i32 s44, s3, {(NW % 3) * SLOT}")
        a("s_cmp_eq_u32 s3, 0")
        a("s_cbranch_scc1 L1_noidle")
        for i in range(NW):
            a("s_barrier")
        a.label("L1_noidle")
    for i in range(NW):
        slot = (i % 4) * SLOT
        a("s_barrier")
        stamp(a)
        if STAG:
            a(f"v_add_u32 v{cE}, s44, v{aWE}")
            a(f"v_add_u32 v{cO}, s44, v{aWO}")
            a(f"s_add_u32 s44, s44, {SLOT}")
            a(f"s_cmp_eq_u32 s44, {3 * SLOT}")
            a("s_cselect_b32 s44, 0, s44")
        else:
            a(f"v_add_u32 v{cE}, {slot}, v{aWE}")
            a(f"v_add_u32 v{cO}, {slot}, v{aWO}")
        if i + XD < NW:
            xloads(i + XD)
        a(f"s_waitcnt vmcnt({4 * (min(i + XD, NW - 1) - i)})")
        items = []
        f = 0
        for s in range(4):
            for t in range(6):
                fr = AF + 4 * (f % 12)
                areg = cE if t % 2 == 0 else cO
                reads = []
                for half in range(2):
                    off = (16 * s + 4 * half) * 384 + 128 * (t >> 1)
                    reads.append(f"ds_read_b64_tr_b16 {vr(fr + 2 * half, 2)}, v{areg} offset:{off}")
                acc = vr(OA + 16 * t, 16)
                c = "0" if (i == 0 and s == 0) else acc
                m = f"v_mfma_f32_32x32x16_bf16 {acc}, {vr(fr, 4)}, {vr(XB[i % 4] + 4 * s, 4)}, {c}"
                items.append((reads, m))
                f += 1
        rolling(a, items, 6)
    stamp(a)
    a("s_nop 15")
    for t in range(6):
        for g2 in range(2):
            fq = QF + 4 * (2 * t + g2)
            src = OA + 16 * t + 8 * g2
            for k in range(4):
                a(f"v_cvt_pk_bf16_f32 v{fq + k}, v{src + 2 * k}, v{src + 2 * k + 1}")
    a("s_nop 1")
    for ks in range(12):
        fq = QF + 4 * ks
        a(f"v_permlane32_swap_b32 v{fq}, v{fq + 2}")
        a(f"v_permlane32_swap_b32 v{fq + 1}, v{fq + 3}")
    for r in range(96):
        a(f"v_mov_b32 v{OA + r}, 0")
    a("s_mov_b32 s48, 0")

    stamp(a)
    a.label("L1_kv_loop")
    a("s_barrier")
    for q4 in range(4):
        a(f"v_add_u32 v{cK + q4}, s47, v{aK + q4}")
    a(f"v_add_u32 v{cE}, s47, v{aVE}")
    a(f"v_add_u32 v{cO}, s47, v{aVO}")
    for s in range(12):
        a(f"ds_read_b128 {vr(AF + 4 * s, 4)}, v{cK + (s & 3)} offset:{128 * (s >> 2)}")
    sacc = vr(SA, 16)
    for s in range(12):
        a(f"s_waitcnt lgkmcnt({11 - s})")
        c = "0" if s == 0 else sacc
        a(f"v_mfma_f32_32x32x16_bf16 {sacc}, {vr(AF + 4 * s, 4)}, {vr(QF + 4 * s, 4)}, {c}")
    vitems = []
    for f in range(12):
        s, t = f // 6, f % 6
        fr = AF + 4 * f
        areg = cE if t % 2 == 0 else cO
        reads = []
        for half in range(2):
            off = 12288 + (16 * s + 8 * half) * 384 + 128 * (t >> 1)
            reads.append(f"ds_read_b64_tr_b16 {vr(fr + 2 * half, 2)}, v{areg} offset:{off}")
        acc = vr(OA + 16 * t, 16)
        m = f"v_mfma_f32_32x32x16_bf16 {acc}, {vr(fr, 4)}, {vr(PF + 4 * s, 4)}, {acc}"
        vitems.append((reads, m))
    for f in range(6):
        for r in vitems[f][0]:
            a(r)
    a("s_nop 3")
    a(f"v_max3_f32 v{vT0}, v{SA}, v{SA + 1}, v{SA + 2}")
    a(f"v_max3_f32 v{vT1}, v{SA + 3}, v{SA + 4}, v{SA + 5}")
    a(f"v_max3_f32 v{vT0}, v{vT0}, v{SA + 6}, v{SA + 7}")
    a(f"v_max3_f32 v{vT1}, v{vT1}, v{SA + 8}, v{SA + 9}")
    a(f"v_max3_f32 v{vT0}, v{vT0}, v{SA + 10}, v{SA + 11}")
    a(f"v_max3_f32 v{vT1}, v{vT1}, v{SA + 12}, v{SA + 13}")
    a(f"v_max3_f32 v{vT0}, v{vT0}, v{SA + 14}, v{SA + 15}")
    a(f"v_max3_f32 v{vT0}, v{vT0}, v{vT1}, v{vM}")
    a(f"v_mov_b32 v{vT1}, v{vT0}")
    a("s_nop 1")
    a(f"v_permlane32_swap_b32 v{vT0}, v{vT1}")
    a("s_nop 1")
    a(f"v_max_f32 v{vT0}, v{vT0}, v{vT1}")
    a(f"v_sub_f32 v{vT1}, v{vM}, v{vT0}")
    a(f"v_mul_f32 v{vT1}, s49, v{vT1}")
    a(f"v_exp_f32 v{vAl}, v{vT1}")
    a(f"v_mov_b32 v{vM}, v{vT0}")
    a(f"v_mul_f32 v{vMC}, s49, v{vT0}")
    a(f"v_mov_b32 v{vAl + 1}, v{vAl}")
    for r in range(16):
        a(f"v_fma_f32 v{SA + r}, v{SA + r}, s49, -v{vMC}")
    for r in range(16):
        a(f"v_exp_f32 v{SA + r}, v{SA + r}")
    for r in range(48):
        a(f"v_pk_mul_f32 {vr(OA + 2 * r, 2)}, {vr(OA + 2 * r, 2)}, {vr(vAl, 2)}")
    a(f"v_add_f32 v{vPS}, v{SA}, v{SA + 1}")
    a(f"v_add_f32 v{vT0}, v{SA + 2}, v{SA + 3}")
    for r in range(4, 16, 2):
        a(f"v_add_f32 v{vPS}, v{vPS}, v{SA + r}")
        a(f"v_add_f32 v{vT0}, v{vT0}, v{SA + r + 1}")
    a(f"v_add_f32 v{vPS}, v{vPS}, v{vT0}")
    a(f"v_fma_f32 v{vL}, v{vL}, v{vAl}, v{vPS}")
    for k in range(8):
        a(f"v_cvt_pk_bf16_f32 v{PF + k}, v{SA + 2 * k}, v{SA + 2 * k + 1}")
    a("s_nop 1")
    for f in range(12):
        if f + 6 < 12:
            for r in vitems[f + 6][0]:
                a(r)
        last = min(f + 6, 11)
        a(f"s_waitcnt lgkmcnt({2 * (last - f)})")
        a(vitems[f][1])
    a("s_mov_b32 s46, s47")
    a("s_mov_b32 s47, s52")
    a("s_mov_b32 s52, s53")
    a("s_mov_b32 s53, s46")
    a("s_add_u32 s48, s48, 1")
    a(f"s_cmp_lt_u32 s48, {NKV}")
    a("s_cbranch_scc1 L1_kv_loop")

    stamp(a)
    a(f"v_mov_b32 v{vT1}, v{vL}")
    a("s_nop 1")
    a(f"v_permlane32_swap_b32 v{vL}, v{vT1}")
    a("s_nop 1")
    a(f"v_add_f32 v{vL}, v{vL}, v{vT1}")
    a(f"v_rcp_f32 v{vAl}, v{vL}")
    a("s_nop 7")
    a(f"v_mov_b32 v{vAl + 1}, v{vAl}")
    for r in range(48):
        a(f"v_pk_mul_f32 {vr(OA + 2 * r, 2)}, {vr(OA + 2 * r, 2)}, {vr(vAl, 2)}")
    for t in range(6):
        for g2 in range(2):
            fq = QF + 4 * (2 * t + g2)
            src = OA + 16 * t + 8 * g2
            for k in range(4):
                a(f"v_cvt_pk_bf16_f32 v{fq + k}, v{src + 2 * k}, v{src + 2 * k + 1}")
    a("s_nop 1")
    for ks in range(12):
        fq = QF + 4 * ks
        a(f"v_permlane32_swap_b32 v{fq}, v{fq + 2}")
        a(f"v_permlane32_swap_b32 v{fq + 1}, v{fq + 3}")
    a("s_nop 1")
    a("s_mov_b32 s45, 4096")
    a("s_mov_b32 s46, 8192")
    for ks in range(12):
        fq = QF + 4 * ks
        so = ["0", "s45", "s46"][ks >> 2]
        a(f"buffer_store_dwordx4 {vr(fq, 4)}, v{vOO}, s[24:27], {so} offen offset:{1024 * (ks & 3)} {P_OST}")
    if STAMP:
        a("s_waitcnt vmcnt(0)")
        stamp(a)
        a("s_waitcnt lgkmcnt(0)")
        a(f"s_cmp_eq_u32 s2, {STAMPWG}")
        a("s_cbranch_scc0 L1_end")
        a("s_cmp_eq_u32 s40, 0")
        a("s_cbranch_scc0 L1_end")
        a("s_cmp_eq_u32 s3, 0")
        a("s_cbranch_scc0 L1_end")
        srd(a, 50, 256, 56)
        a("v_mov_b32 v1, 0")
        for k in range(_stamp_n[0]):
            a(f"s_sub_u32 s55, s{60 + 2 * k}, s60")
            a("v_mov_b32 v3, s55")
            a(f"buffer_store_dword v3, v1, s[56:59], 0 offen offset:{4 * k}")
    a.label("L1_end")
    a("s_endpgm")


K2 = "oproj_kernel"
S2 = 16384
NS2 = 8
NST2 = 24
OD2 = 7
PART_OFF = 18874368
PART_SLICE = 3932160


def gen_oproj(a):
    a.raw(f".globl {K2}")
    a.raw(".p2align 8")
    a.raw(f".type {K2},@function")
    a.label(K2)
    a("s_cmp_ge_u32 s2, 240")
    a("s_cbranch_scc1 L2_end")
    a("s_load_dwordx2 s[28:29], s[0:1], 32")
    a("s_load_dwordx2 s[30:31], s[0:1], 56")
    a("s_load_dwordx2 s[50:51], s[0:1], 48")
    a("s_load_dwordx2 s[34:35], s[0:1], 40")
    _stamp_n[0] = 0
    stamp(a, STAMP2)
    a("v_lshrrev_b32 v1, 6, v0")
    a("v_and_b32 v2, 63, v0")
    a("v_readfirstlane_b32 s40, v1")
    a("s_and_b32 s38, s2, 3")
    a("s_lshr_b32 s39, s2, 3")
    a("s_bfe_u32 s41, s2, 0x10002")
    a("s_mul_i32 s41, s41, 30")
    a("s_add_u32 s39, s39, s41")
    a("s_mul_i32 s41, s39, 0xcccd")
    a("s_lshr_b32 s41, s41, 18")
    a("s_mul_i32 s42, s41, 5")
    a("s_sub_u32 s42, s39, s42")
    a("s_waitcnt lgkmcnt(0)")
    srd(a, 28, 7864320, 8)
    srd(a, 30, 18874368, 12)
    a(f"s_add_u32 s32, s30, {PART_OFF}")
    a("s_addc_u32 s33, s31, 0")
    srd(a, 32, 4 * PART_SLICE, 16)
    srd(a, 50, 256, 20)
    srd(a, 34, 1966080, 24)
    a("s_cmp_ge_u32 s40, 4")
    a("s_cbranch_scc0 L2_compute")
    a("v_lshrrev_b32 v3, 4, v2")
    a("v_and_b32 v4, 15, v2")
    a("v_lshlrev_b32 v5, 2, v3")
    a("v_xor_b32 v4, v4, v5")
    a("v_lshlrev_b32 v4, 4, v4")
    a("v_mul_u32_u24 v5, 0x500, v3")
    a("v_add_u32 v10, v4, v5")
    a("s_sub_u32 s43, s40, 4")
    a("s_mul_i32 s45, s38, 1966080")
    a("s_lshl_b32 s46, s42, 8")
    a("s_add_u32 s45, s45, s46")
    a("s_mul_i32 s46, s43, 40960")
    a("s_add_u32 s45, s45, s46")
    a("s_lshl_b32 s44, s43, 13")

    def issue(i):
        a(f"s_add_u32 m0, s44, {(i % NS2) * S2}")
        a("s_nop 0")
        for jj in range(8):
            a(f"buffer_load_dwordx4 v10, s[8:11], s45 offen {P_WO} lds")
            a("s_add_u32 m0, m0, 0x400")
            a(f"s_add_u32 s45, s45, {5120 if jj < 7 else 5120 + 40960}")

    for i in range(6):
        issue(i)
    nissued = 6
    for n in range(NST2 // 2):
        a(f"s_waitcnt vmcnt({8 * (nissued - 2 * n - 2)})")
        a("s_barrier")
        for _ in range(2):
            if nissued < NST2:
                issue(nissued)
                nissued += 1
    a("s_endpgm")
    OB = [16 + 16 * i for i in range(8)]
    AC = 144
    AF = 208
    aW = 10
    vXO, vPO = 14, 15
    a.label("L2_compute")
    a("v_and_b32 v3, 15, v2")
    a("v_lshrrev_b32 v4, 5, v2")
    a("v_and_b32 v5, 31, v2")
    a("v_lshrrev_b32 v6, 4, v2")
    a("v_and_b32 v6, 1, v6")
    a("v_lshrrev_b32 v7, 2, v3")
    a("v_and_b32 v8, 3, v3")
    a("v_lshlrev_b32 v8, 3, v8")
    a("v_lshl_add_u32 v8, v6, 5, v8")
    a("v_lshl_add_u32 v9, v4, 3, v7")
    a("v_lshl_add_u32 v8, v9, 8, v8")
    for t in range(4):
        a(f"v_xor_b32 v9, {t}, v7")
        a(f"v_lshl_add_u32 v{aW + t}, v9, 6, v8")
    a("s_lshl_b32 s45, s41, 7")
    a("s_lshl_b32 s46, s40, 5")
    a("s_add_u32 s45, s45, s46")
    a("v_add_u32 v9, s45, v5")
    a("s_lshr_b32 s46, s45, 5")
    a("s_mul_i32 s46, s46, 384")
    a("s_mul_i32 s47, s38, 96")
    a("s_add_u32 s46, s46, s47")
    a("s_lshl_b32 s48, s46, 10")
    a(f"v_lshlrev_b32 v{vXO}, 4, v2")
    if FUSERED:
        a("s_lshl_b32 s47, s39, 2")
        a("s_add_u32 s47, s47, s40")
        a("s_lshl_b32 s47, s47, 16")
        a(f"v_lshlrev_b32 v{vPO}, 4, v2")
        a(f"v_add_u32 v{vPO}, s47, v{vPO}")
        a("v_mul_u32_u24 v7, 0x500, v9")
        a("v_lshl_add_u32 v7, v4, 4, v7")
        a("s_lshl_b32 s46, s42, 8")
        a("s_lshl_b32 s47, s38, 6")
        a("s_add_u32 s46, s46, s47")
        a("v_add_u32 v7, s46, v7")
    else:
        a(f"s_mul_i32 s46, s38, {PART_SLICE}")
        a("s_lshl_b32 s47, s39, 2")
        a("s_add_u32 s47, s47, s40")
        a("s_lshl_b32 s47, s47, 14")
        a("s_add_u32 s46, s46, s47")
        a(f"v_lshlrev_b32 v{vPO}, 4, v2")
        a(f"v_add_u32 v{vPO}, s46, v{vPO}")
    for t in range(4):
        a(f"v_add_u32 v{3 + t}, 0x10000, v{aW + t}")

    def oloads(i):
        for s in range(4):
            a(f"buffer_load_dwordx4 {vr(OB[i % 8] + 4 * s, 4)}, v{vXO}, s[12:15], s48 offen offset:{1024 * s} {P_OLD}")
        a("s_add_u32 s48, s48, 4096")

    if PTOUCH:
        a(f"buffer_load_dword v8, v{vPO}, s[16:19], 0 offen")
    for i in range(OD2):
        oloads(i)
    fcount = 0
    for i in range(NST2):
        sl = i % NS2
        abase = aW if sl < 4 else 3
        slot = (sl % 4) * S2
        if i % 2 == 0:
            a("s_barrier")
            stamp(a, STAMP2)
        if i + OD2 < NST2:
            oloads(i + OD2)
        a(f"s_waitcnt vmcnt({4 * (min(i + OD2, NST2 - 1) - i)})")
        items = []
        for s in range(4):
            for t in range(4):
                fr = AF + 4 * (fcount % 12)
                fcount += 1
                reads = []
                for half in range(2):
                    off = slot + (16 * s + 4 * half) * 256
                    reads.append(f"ds_read_b64_tr_b16 {vr(fr + 2 * half, 2)}, v{abase + t} offset:{off}")
                acc = vr(AC + 16 * t, 16)
                c = "0" if (i == 0 and s == 0) else acc
                m = f"v_mfma_f32_32x32x16_bf16 {acc}, {vr(fr, 4)}, {vr(OB[i % 8] + 4 * s, 4)}, {c}"
                items.append((reads, m))
        rolling(a, items, 6)
    a("s_nop 15")
    if FUSERED:
        a("s_lshl_b32 s46, s38, 12")
        for t in range(4):
            a(f"s_add_u32 s45, s46, {16384 * t}")
            for q in range(4):
                a(f"buffer_store_dwordx4 {vr(AC + 16 * t + 4 * q, 4)}, v{vPO}, s[16:19], s45 offen offset:{1024 * q} sc1")
        a("s_waitcnt vmcnt(0)")
        a("s_barrier")
        a("s_cmp_eq_u32 s40, 0")
        a("s_cbranch_scc0 L2_wait")
        a("s_mov_b64 exec, 1")
        a("s_lshl_b32 s45, s39, 2")
        a("v_mov_b32 v16, s45")
        a("v_mov_b32 v17, 1")
        a("buffer_atomic_add v17, v16, s[20:23], 0 offen sc1")
        a("s_mov_b32 s46, 0")
        a.label("L2_poll")
        a("buffer_load_dword v18, v16, s[20:23], 0 offen sc1")
        a("s_waitcnt vmcnt(0)")
        a("v_readfirstlane_b32 s45, v18")
        a("s_add_u32 s46, s46, 1")
        a("s_cmp_ge_u32 s45, 4")
        a("s_cbranch_scc1 L2_polldone")
        a("s_sleep 1")
        a("s_cmp_lt_u32 s46, 0x400000")
        a("s_cbranch_scc1 L2_poll")
        a.label("L2_polldone")
        a("s_mov_b64 exec, -1")
        a.label("L2_wait")
        a("s_barrier")
        a("s_lshl_b32 s46, s38, 14")
        for src in range(4):
            a(f"s_add_u32 s45, s46, {4096 * src}")
            for q in range(4):
                a(f"buffer_load_dwordx4 {vr(16 + 16 * src + 4 * q, 4)}, v{vPO}, s[16:19], s45 offen offset:{1024 * q} sc1")
        for src in range(1, 4):
            a(f"s_waitcnt vmcnt({4 * (3 - src)})")
            for e in range(16):
                a(f"v_add_f32 v{16 + e}, v{16 + e}, v{16 + 16 * src + e}")
        for e in range(8):
            a(f"v_cvt_pk_bf16_f32 v{32 + e}, v{16 + 2 * e}, v{17 + 2 * e}")
        a("s_nop 1")
        for g2 in range(2):
            a(f"v_permlane32_swap_b32 v{32 + 4 * g2}, v{34 + 4 * g2}")
            a(f"v_permlane32_swap_b32 v{33 + 4 * g2}, v{35 + 4 * g2}")
        a("s_nop 1")
        for g2 in range(2):
            a(f"buffer_store_dwordx4 {vr(32 + 4 * g2, 4)}, v7, s[24:27], 0 offen offset:{32 * g2}")
    else:
      for t in range(4):
        a(f"s_mov_b32 s45, {4096 * t}")
        for q in range(4):
            a(f"buffer_store_dwordx4 {vr(AC + 16 * t + 4 * q, 4)}, v{vPO}, s[16:19], s45 offen offset:{1024 * q} {P_PART}")
    if STAMP2:
        stamp(a, STAMP2)
        a("s_waitcnt vmcnt(0)")
        stamp(a, STAMP2)
        a("s_waitcnt lgkmcnt(0)")
        a(f"s_cmp_eq_u32 s2, {STAMPWG}")
        a("s_cbranch_scc0 L2_end")
        a("s_cmp_eq_u32 s40, 0")
        a("s_cbranch_scc0 L2_end")
        srd(a, 50, 256, 56)
        a("v_mov_b32 v1, 0")
        for k in range(_stamp_n[0]):
            a(f"s_sub_u32 s55, s{60 + 2 * k}, s60")
            a("v_mov_b32 v3, s55")
            a(f"buffer_store_dword v3, v1, s[56:59], 0 offen offset:{4 * k}")
    a.label("L2_end")
    a("s_endpgm")


K3 = "reduce_kernel"


def gen_reduce(a):
    a.raw(f".globl {K3}")
    a.raw(".p2align 8")
    a.raw(f".type {K3},@function")
    a.label(K3)
    a("s_cmp_ge_u32 s2, 960")
    a("s_cbranch_scc1 L3_end")
    a("s_load_dwordx2 s[28:29], s[0:1], 40")
    a("s_load_dwordx2 s[30:31], s[0:1], 56")
    a("s_lshl_b32 s3, s2, 8")
    a("v_add_u32 v1, s3, v0")
    a("v_lshlrev_b32 v2, 4, v1")
    a("s_lshr_b32 s39, s2, 4")
    a("s_mul_i32 s41, s39, 0xcccd")
    a("s_lshr_b32 s41, s41, 18")
    a("s_mul_i32 s42, s41, 5")
    a("s_sub_u32 s42, s39, s42")
    a("s_lshr_b32 s43, s2, 2")
    a("s_and_b32 s43, s43, 3")
    a("s_and_b32 s44, s2, 3")
    a("s_lshl_b32 s45, s41, 7")
    a("s_lshl_b32 s46, s43, 5")
    a("s_add_u32 s45, s45, s46")
    a("s_lshl_b32 s46, s42, 7")
    a("s_lshl_b32 s47, s44, 5")
    a("s_add_u32 s46, s46, s47")
    a("v_and_b32 v3, 31, v0")
    a("v_add_u32 v3, s45, v3")
    a("v_mul_u32_u24 v3, 0x500, v3")
    a("v_lshrrev_b32 v4, 6, v0")
    a("v_lshlrev_b32 v4, 3, v4")
    a("v_bfe_u32 v5, v0, 5, 1")
    a("v_lshl_add_u32 v4, v5, 2, v4")
    a("v_add_u32 v4, s46, v4")
    a("v_lshl_add_u32 v3, v4, 1, v3")
    a("s_waitcnt lgkmcnt(0)")
    srd(a, 28, 1966080, 8)
    a(f"s_add_u32 s32, s30, {PART_OFF}")
    a("s_addc_u32 s33, s31, 0")
    srd(a, 32, 4 * PART_SLICE, 12)
    for k in range(1, 4):
        a(f"s_mov_b32 s{36 + k}, {k * PART_SLICE}")
    for k in range(4):
        so = "0" if k == 0 else f"s{36 + k}"
        a(f"buffer_load_dwordx4 {vr(8 + 4 * k, 4)}, v2, s[12:15], {so} offen {P_RED}")
    a("s_waitcnt vmcnt(2)")
    for e in range(4):
        a(f"v_add_f32 v{8 + e}, v{8 + e}, v{12 + e}")
    a("s_waitcnt vmcnt(0)")
    for e in range(4):
        a(f"v_add_f32 v{16 + e}, v{16 + e}, v{20 + e}")
    for e in range(4):
        a(f"v_add_f32 v{8 + e}, v{8 + e}, v{16 + e}")
    for e in range(2):
        a(f"v_cvt_pk_bf16_f32 v{6 + e}, v{8 + 2 * e}, v{9 + 2 * e}")
    a("buffer_store_dwordx2 v[6:7], v3, s[8:11], 0 offen")
    a.label("L3_end")
    a("s_endpgm")


def kd(name, vgpr, sgpr=102):
    acc = (vgpr + 3) // 4 * 4
    return f""".p2align 6
.amdhsa_kernel {name}
  .amdhsa_next_free_vgpr {vgpr}
  .amdhsa_next_free_sgpr {sgpr}
  .amdhsa_accum_offset {acc}
  .amdhsa_group_segment_fixed_size 0
  .amdhsa_kernarg_size 64
  .amdhsa_user_sgpr_count 2
  .amdhsa_user_sgpr_kernarg_segment_ptr 1
  .amdhsa_system_sgpr_workgroup_id_x 1
.end_amdhsa_kernel
"""


def main():
    a = Asm()
    out = HEADER
    out += f"; @launch kernel={MAIN} grid=(256,1,1) block=(512,1,1) lds={SLOT * 6}\n"
    out += f"; @launch kernel={K2} grid=(240,1,1) block=(384,1,1) lds={S2 * NS2}\n"
    if not FUSERED:
        out += f"; @launch kernel={K3} grid=(960,1,1) block=(256,1,1) lds=0\n"
    out += '.amdgcn_target "amdgcn-amd-amdhsa--gfx950"\n.text\n'
    gen_attn(a)
    gen_oproj(a)
    if not FUSERED:
        gen_reduce(a)
    out += a.text()
    out += '.section .rodata,"a"\n'
    out += kd(MAIN, 256)
    out += kd(K2, 256)
    if not FUSERED:
        out += kd(K3, 24)
    open(OUT, "w").write(out)
    print("wrote", OUT, len(out), "bytes")


if __name__ == "__main__":
    main()
```

```python
import math
import struct
import sys
import os
NOCOMP=int(os.environ.get("NOCOMP","0"))
NOLOAD=int(os.environ.get("NOLOAD","0"))
KVPOL=os.environ.get("KVPOL","nt")
NTOUCH=int(os.environ.get("NTOUCH","0"))
STAMP=int(os.environ.get("STAMP","0"))
MAP=int(os.environ.get("MAP","1"))
ROT=int(os.environ.get("ROT","1"))
STAMPWG=int(os.environ.get("STAMPWG","0"))
STAMP2=int(os.environ.get("STAMP2","0"))
FUSERED=int(os.environ.get("FUSERED","0"))
P_PART=os.environ.get("P_PART","nt")
P_RED=os.environ.get("P_RED","nt")
P_OST=os.environ.get("P_OST","")
P_WO=os.environ.get("P_WO","")
P_OLD=os.environ.get("P_OLD","nt")
P_WQ=os.environ.get("P_WQ","")
P_X=os.environ.get("P_X","")
WOPF=int(os.environ.get("WOPF","-2"))
STAG=int(os.environ.get("STAG","0"))
LSTAMP=int(os.environ.get("LSTAMP","0"))
TLBT=int(os.environ.get("TLBT","0"))
PTOUCH=int(os.environ.get("PTOUCH","0"))
LLOOP=int(os.environ.get("LLOOP","1"))
FSC="sc1" if FUSERED == 1 else ""
APF=int(os.environ.get("APF","4"))

OUT = os.environ.get("OUT", "standalone__mha_block_cached__near_ridge.s")

HEADER = open("standalone__mha_block_cached__near_ridge.s.ref").read().split("; Override launch geometry")[0]

MAIN = "standalone__mha_block_cached__near_ridge_kernel"


def f32bits(x):
    return struct.unpack("<I", struct.pack("<f", x))[0]


class Asm:
    def __init__(self):
        self.lines = []

    def __call__(self, s):
        self.lines.append("    " + s)

    def label(self, l):
        self.lines.append(l + ":")

    def raw(self, s):
        self.lines.append(s)

    def text(self):
        return "\n".join(self.lines) + "\n"


def vr(a, n):
    return f"v[{a}:{a + n - 1}]"


def srd(a, base, nbytes, sreg):
    a(f"s_mov_b32 s{sreg}, s{base}")
    a(f"s_and_b32 s{sreg + 1}, s{base + 1}, 0xffff")
    a(f"s_mov_b32 s{sreg + 2}, {nbytes}")
    a(f"s_mov_b32 s{sreg + 3}, 0x00020000")


_stamp_n = [0]


def stamp(a, on=None):
    if not (STAMP if on is None else on):
        return
    k = _stamp_n[0]
    _stamp_n[0] += 1
    a(f"s_memtime s[{60 + 2 * k}:{61 + 2 * k}]")


def rolling(a, items, window, nslots_reads=None):
    n = len(items)
    nr = [len(it[0]) for it in items]
    for f in range(min(window, n)):
        for r in items[f][0]:
            a(r)
    for f in range(n):
        if f + window < n:
            for r in items[f + window][0]:
                a(r)
        last = min(f + window, n - 1)
        outstanding = sum(nr[f + 1:last + 1])
        assert outstanding <= 15
        a(f"s_waitcnt lgkmcnt({outstanding})")
        a(items[f][1])


SLOT = 24576
NW = 10
NKV = int(os.environ.get("NKV", "32"))
NST = NW + NKV
REGST = 0
if STAG:
    ARING = [3, 4, 5]
    BRING = [2, 0, 1]
    NSTEP = NST + NW
else:
    ARING = [2, 3, 0]
    BRING = [4, 5, 1]
    NSTEP = NST


def attn_schedule(L):
    sched = {n: [] for n in range(-1, NSTEP)}
    ring = {"A": ARING, "B": BRING}

    def both(n, kind, idx, slot):
        sched[n] += [(kind, idx, slot, 0), (kind, idx, slot, 1)]

    if not STAG:
        for i in range(2):
            sched[-1].append(("W", i, i, L, True))
        if L == 0:
            for n in range(0, 8):
                both(n, "W", n + 2, (n + 2) % 4)
        else:
            BPF = int(os.environ.get("BPF", "5"))
            dma = {7: [("A", 0)], 8: [("A", 1)], 9: [("A", 2)], 10: [("B", 2)]}
            if BPF < 0:
                dma[-1] = [("B", 0), ("B", 1)]
            else:
                dma[BPF] = [("B", 0)]
                dma[BPF + 1] = [("B", 1)]
            for n, l in dma.items():
                for (u, t) in l:
                    if t < NKV:
                        both(n, u, t, ring[u][t % 3])
        for t in range(1, NKV):
            if t + 2 < NKV:
                sched[NW + t].append(("A", t + 2, ARING[(t + 2) % 3], L))
                sched[NW + t].append(("B", t + 2, BRING[(t + 2) % 3], L))
        return sched
    if L == 0:
        both(-1, "W", 0, 0)
        both(-1, "W", 1, 1)
        for n in range(0, 2 * NW - 2):
            both(n, "W", n + 2, (n + 2) % 3)
    else:
        for t in range(3):
            both(APF + t, "A", t, ARING[t])
            both(2 * NW - 2 + t, "B", t, BRING[t])
    for t in range(1, NKV - 2):
        n = NW + t
        if n < 2 * NW:
            if L == 1:
                both(n, "A", t + 2, ARING[(t + 2) % 3])
        else:
            sched[n].append(("A", t + 2, ARING[(t + 2) % 3], L))
        sched[2 * NW + t].append(("B", t + 2, BRING[(t + 2) % 3], L))
    return sched


def step_needs(n):
    if not STAG:
        return [("W", n)] if n < NW else [("A", n - NW), ("B", n - NW)]
    need = []
    if n < 2 * NW:
        need.append(("W", n))
    if NW <= n < NW + NKV:
        need.append(("A", n - NW))
    if n >= 2 * NW:
        need.append(("B", n - 2 * NW))
    return need


def gen_attn(a):
    a.raw(f".globl {MAIN}")
    a.raw(".p2align 8")
    a.raw(f".type {MAIN},@function")
    a.label(MAIN)
    a("s_cmp_ge_u32 s2, 256")
    a("s_cbranch_scc1 L1_end")
    a("s_load_dwordx8 s[28:35], s[0:1], 0")
    a("s_load_dwordx2 s[36:37], s[0:1], 56")
    a("s_load_dwordx2 s[50:51], s[0:1], 48")
    a("s_load_dwordx2 s[92:93], s[0:1], 32")
    stamp(a, STAMP or LSTAMP)
    a("v_lshrrev_b32 v1, 6, v0")
    a("v_and_b32 v2, 63, v0")
    a("v_readfirstlane_b32 s40, v1")
    a("s_and_b32 s39, s2, 31")
    a("s_lshr_b32 s38, s2, 5")
    a("s_lshr_b32 s3, s40, 2")
    a("s_and_b32 s40, s40, 3")
    a("s_lshr_b32 s55, s39, 3")
    a("s_mul_i32 s55, s55, 3")
    a("s_add_u32 s55, s55, s38")
    a("s_cmp_ge_u32 s55, 10")
    a("s_cselect_b32 s54, 10, 0")
    a("s_sub_u32 s55, s55, s54")
    if not ROT:
        a("s_mov_b32 s55, 0")
    a("s_waitcnt lgkmcnt(0)")
    stamp(a, LSTAMP)
    srd(a, 28, 1966080, 8)
    srd(a, 30, 201326592, 12)
    srd(a, 32, 201326592, 16)
    srd(a, 34, 7864320, 20)
    srd(a, 36, 18874368, 24)
    srd(a, 92, 7864320, 96)
    a("s_cmp_eq_u32 s40, 3")
    a("s_cbranch_scc0 L1_compute")

    for jj in range(6):
        a(f"v_add_u32 v3, {64 * jj}, v2")
        a("v_mul_u32_u24 v4, 0xaab, v3")
        a("v_lshrrev_b32 v4, 16, v4")
        a("v_mul_u32_u24 v5, 24, v4")
        a("v_sub_u32 v5, v3, v5")
        a("v_lshrrev_b32 v6, 1, v4")
        a("v_and_b32 v7, 7, v6")
        a("v_xor_b32 v7, v7, v5")
        a("v_lshlrev_b32 v7, 4, v7")
        a("v_mul_u32_u24 v8, 0x180, v4")
        a(f"v_add_u32 v{10 + jj}, v7, v8")
        if jj < 3:
            a("v_and_b32 v7, 1, v6")
            a("v_lshlrev_b32 v7, 2, v7")
            a("v_xor_b32 v7, v7, v5")
            a("v_lshlrev_b32 v7, 4, v7")
            a(f"v_add_u32 v{16 + jj}, v7, v8")
            a("v_mul_u32_u24 v8, 0x3000, v4")
            a(f"v_add_u32 v{19 + jj}, v7, v8")
    a("s_lshl_b32 s41, s38, 5")
    a("s_add_u32 s41, s41, s39")
    a("s_mul_i32 s41, s41, 393216")
    a(f"s_add_u32 s42, s41, {256 * 393216}")
    a("s_mul_i32 s43, s39, 384")
    a("s_mul_i32 s45, s3, 12288")
    a("s_mul_i32 s47, s55, 786432")
    a("v_lshlrev_b32 v22, 4, v2")
    a("v_add_u32 v22, s45, v22")
    a("s_cmp_eq_u32 s3, 0")
    a("s_cbranch_scc0 L1_loader1")
    for L in range(2):
        sched = attn_schedule(L)
        if L == 1:
            a.label("L1_loader1")
        issued = []
        state = {"out": 0}

        def waitfor(need):
            last = max(i for i, x in enumerate(issued) if x in need)
            cnt = 12 * (len(issued) - 1 - last)
            if cnt < state["out"]:
                a(f"s_waitcnt vmcnt({cnt})")
                state["out"] = cnt

        def kvsrc(u, idx, emit, hh):
            base = "s41" if u == "A" else "s42"
            a(f"s_add_u32 s46, {base}, {idx * 12288}")
            j = 0
            if hh == 0:
                for half in range(2):
                    for jj in range(6):
                        emit(j, 10 + jj, "s[12:15]")
                        j += 1
                        a("s_add_u32 s46, s46, 6144" if jj == 5 else "s_nop 0")
            else:
                for g in range(4):
                    for jj in range(3):
                        emit(j, 16 + jj, "s[16:19]")
                        j += 1
                        a("s_add_u32 s46, s46, 3072" if jj == 2 else "s_nop 0")

        def rbase(u, t):
            return 32 + 48 * ((0 if u == "A" else 1) + 2 * (t & 1))

        def issue(ev):
            if NOLOAD:
                return
            kind = ev[0]
            if kind == "X":
                _, u, t, slot = ev
                waitfor([("R" + u, t)])
                a(f"v_add_u32 v23, {slot * SLOT}, v22")
                rb = rbase(u, t)
                for j in range(12):
                    a(f"ds_write_b128 v23, {vr(rb + 4 * j, 4)} offset:{1024 * j}")
                return
            if state["out"] + 12 > 63:
                state["out"] = 48
                a("s_waitcnt vmcnt(48)")
            state["out"] += 12
            if kind == "R":
                _, u, t = ev
                rb = rbase(u, t)
                a("s_waitcnt lgkmcnt(0)")
                kvsrc(u, t, lambda j, v, sr: a(f"buffer_load_dwordx4 {vr(rb + 4 * j, 4)}, v{v}, {sr}, s46 offen {KVPOL}"), L)
                issued.append(("R" + u, t))
                return
            idx, slot, hh = ev[1:4]
            a(f"s_mov_b32 m0, {slot * SLOT + hh * 12288}")
            if kind == "W":
                a("s_add_u32 s46, s43, s47")
                if hh == 1:
                    a("s_add_u32 s46, s46, 393216")
                if hh == 1 or len(ev) > 4:
                    a("s_add_u32 s47, s47, 786432")
                    a("s_cmp_eq_u32 s47, 7864320")
                    a("s_cselect_b32 s47, 0, s47")
                for g in range(4):
                    for jj in range(3):
                        a(f"buffer_load_dwordx4 v{19 + jj}, s[20:23], s46 offen {P_WQ} lds")
                        a("s_add_u32 m0, m0, 0x400")
                        a("s_add_u32 s46, s46, 98304" if jj == 2 else "s_nop 0")
            else:
                def em(j, v, sr):
                    a(f"buffer_load_dwordx4 v{v}, {sr}, s46 offen {KVPOL} lds")
                    a("s_add_u32 m0, m0, 0x400")
                kvsrc(kind, idx, em, hh)
            issued.append((kind, idx))

        if L == 0:
            stamp(a, LSTAMP)
        for it in sched[-1]:
            issue(it)
        if L == 0:
            stamp(a, LSTAMP)
        T0, T1 = 3, NKV - 3
        useloop = LLOOP and not STAG and not NOLOAD and NKV == 32
        for n in range(NSTEP):
            t = n - NW
            if useloop and T0 <= t <= T1:
                if t == T0:
                    for k in range(3):
                        a(f"s_mov_b32 s{72 + k}, {ARING[(T0 + 2 + k) % 3] * SLOT + L * 12288}")
                        a(f"s_mov_b32 s{76 + k}, {BRING[(T0 + 2 + k) % 3] * SLOT + L * 12288}")
                    a(f"s_mov_b32 s75, {(T0 + 2) * 12288}")
                    a(f"s_mov_b32 s79, {T1 - T0 + 1}")
                    a.label(f"L1_ldloop{L}")
                    a("s_waitcnt vmcnt(24)")
                    a("s_barrier")
                    for u, sb in (("A", 72), ("B", 76)):
                        a(f"s_mov_b32 m0, s{sb}")
                        base = "s41" if u == "A" else "s42"
                        a(f"s_add_u32 s46, {base}, s75")
                        if L == 0:
                            for half in range(2):
                                for jj in range(6):
                                    a(f"buffer_load_dwordx4 v{10 + jj}, s[12:15], s46 offen {KVPOL} lds")
                                    a("s_add_u32 m0, m0, 0x400")
                                    a("s_add_u32 s46, s46, 6144" if jj == 5 else "s_nop 0")
                        else:
                            for g in range(4):
                                for jj in range(3):
                                    a(f"buffer_load_dwordx4 v{16 + jj}, s[16:19], s46 offen {KVPOL} lds")
                                    a("s_add_u32 m0, m0, 0x400")
                                    a("s_add_u32 s46, s46, 3072" if jj == 2 else "s_nop 0")
                        a(f"s_mov_b32 s46, s{sb}")
                        a(f"s_mov_b32 s{sb}, s{sb + 1}")
                        a(f"s_mov_b32 s{sb + 1}, s{sb + 2}")
                        a(f"s_mov_b32 s{sb + 2}, s46")
                    a("s_add_u32 s75, s75, 12288")
                    a("s_sub_u32 s79, s79, 1")
                    a("s_cmp_lg_u32 s79, 0")
                    a(f"s_cbranch_scc1 L1_ldloop{L}")
                assert sched[n] == [("A", t + 2, ARING[(t + 2) % 3], L), ("B", t + 2, BRING[(t + 2) % 3], L)]
                assert issued[-4:] == [("A", t), ("B", t), ("A", t + 1), ("B", t + 1)], (L, t, issued[-4:])
                issued += [("A", t + 2), ("B", t + 2)]
                state["out"] = 48
                continue
            need = [x for x in step_needs(n) if x in issued]
            if not NOLOAD:
                if need:
                    waitfor(need)
                a("s_waitcnt lgkmcnt(0)")
            if L == 0 and n < 4:
                stamp(a, LSTAMP)
            a("s_barrier")
            if WOPF and L == 1 and n == NSTEP + WOPF:
                a("v_lshlrev_b32 v24, 7, v2")
                a("s_mul_i32 s46, s2, 30720")
                for k in range(4):
                    a(f"buffer_load_dword v{25 + k}, v24, s[96:99], s46 offen")
                    a("s_add_u32 s46, s46, 8192")
                a("s_waitcnt vmcnt(0)")
                state["out"] = 0
            for it in sched[n]:
                issue(it)
        if LSTAMP and L == 0:
            a("s_waitcnt lgkmcnt(0)")
            a(f"s_cmp_eq_u32 s2, {STAMPWG}")
            a("s_cbranch_scc0 L1_end")
            srd(a, 50, 256, 56)
            a("v_mov_b32 v1, 0")
            for k in range(_stamp_n[0]):
                a(f"s_sub_u32 s55, s{60 + 2 * k}, s60")
                a("v_mov_b32 v3, s55")
                a(f"buffer_store_dword v3, v1, s[56:59], 0 offen offset:{4 * k}")
        a("s_endpgm")

    QF = 16
    OA = 64
    SA = 160
    PF = 176
    AF = 184
    aWE, aWO, aVE, aVO = 10, 11, 12, 13
    aK = 232
    cE, cO = 236, 237
    cK = 238
    vM, vL, vAl, vMC, vT0, vT1, vPS, vXO, vOO = 242, 243, 244, 246, 247, 248, 249, 250, 251
    a.label("L1_compute")
    if TLBT:
        a(f"s_mov_b32 s45, {TLBT}")
        a("v_mul_lo_u32 v3, v2, s45")
        a("s_lshl_b32 s46, s40, 1")
        a("s_add_u32 s46, s46, s3")
        a(f"s_mul_i32 s46, s46, {64 * TLBT}")
        nt = (7864320 + 6 * 64 * TLBT - 1) // (6 * 64 * TLBT)
        for k in range(nt):
            a(f"buffer_load_dword v{240 + (k & 7)}, v3, s[20:23], s46 offen")
            a(f"s_add_u32 s46, s46, {6 * 64 * TLBT}")
    if NOCOMP:
        for i in range(NSTEP):
            a("s_barrier")
        a("s_endpgm")
    a("v_and_b32 v3, 15, v2")
    a("v_lshrrev_b32 v4, 5, v2")
    a("v_and_b32 v5, 31, v2")
    a("v_lshrrev_b32 v6, 4, v2")
    a("v_and_b32 v6, 1, v6")
    a("v_lshrrev_b32 v7, 2, v3")
    a("v_and_b32 v8, 3, v3")
    a("v_lshlrev_b32 v8, 3, v8")
    a("v_lshl_add_u32 v8, v6, 5, v8")
    a("v_lshrrev_b32 v9, 3, v3")
    a("v_lshlrev_b32 v9, 6, v9")
    a("v_lshl_add_u32 v14, v4, 3, v7")
    a("v_mul_u32_u24 v14, 0x180, v14")
    a("v_add_u32 v14, v14, v8")
    a(f"v_add_u32 v{aWE}, v14, v9")
    a(f"v_xor_b32 v15, 64, v9")
    a(f"v_add_u32 v{aWO}, v14, v15")
    a("v_lshl_add_u32 v14, v4, 2, v7")
    a("v_mul_u32_u24 v14, 0x180, v14")
    a("v_add_u32 v14, v14, v8")
    a(f"v_add_u32 v{aVE}, v14, v9")
    a(f"v_add_u32 v{aVO}, v14, v15")
    a("v_lshrrev_b32 v14, 1, v5")
    a("v_and_b32 v14, 7, v14")
    a("v_mul_u32_u24 v15, 0x180, v5")
    for q4 in range(4):
        a(f"v_add_u32 v9, {2 * q4}, v4")
        a("v_xor_b32 v9, v9, v14")
        a(f"v_lshl_add_u32 v{aK + q4}, v9, 4, v15")
    a("s_lshl_b32 s45, s3, 3")
    a("s_add_u32 s45, s45, s38")
    a("s_mul_i32 s45, s45, 96")
    a("s_lshl_b32 s46, s40, 5")
    a("s_add_u32 s45, s45, s46")
    a("v_add_u32 v14, s45, v5")
    a("v_lshlrev_b32 v15, 4, v4")
    a(f"v_mul_u32_u24 v{vXO}, 0x500, v14")
    a(f"v_add_u32 v{vXO}, v{vXO}, v15")
    a("s_lshr_b32 s46, s45, 5")
    a("s_mul_i32 s46, s46, 384")
    a("s_mul_i32 s47, s39, 12")
    a("s_add_u32 s46, s46, s47")
    a("s_lshl_b32 s46, s46, 10")
    a(f"v_lshlrev_b32 v{vOO}, 4, v2")
    a(f"v_add_u32 v{vOO}, s46, v{vOO}")
    a(f"v_mov_b32 v{vM}, 0xff800000")
    a(f"v_mov_b32 v{vL}, 0")
    cval = (192 ** -0.5) * math.log2(math.e)
    a(f"s_mov_b32 s49, 0x{f32bits(cval):08x}")
    a("s_cmp_eq_u32 s3, 0")
    for k, sr in enumerate((47, 52, 53)):
        a(f"s_mov_b32 s{sr}, {BRING[k] * SLOT}")
        a(f"s_cselect_b32 s{sr}, {ARING[k] * SLOT}, s{sr}")

    XB = [16, 32, 48, 160]
    XD = 3

    a("s_lshl_b32 s54, s55, 7")

    def xloads(i):
        for s in range(4):
            a(f"buffer_load_dwordx4 {vr(XB[i % 4] + 4 * s, 4)}, v{vXO}, s[8:11], s54 offen offset:{32 * s} {P_X}")
        a("s_add_u32 s54, s54, 128")
        a("s_cmp_eq_u32 s54, 1280")
        a("s_cselect_b32 s54, 0, s54")

    for i in range(XD):
        xloads(i)
    if STAG:
        a(f"s_mul_i32 s44, s3, {(NW % 3) * SLOT}")
        a("s_cmp_eq_u32 s3, 0")
        a("s_cbranch_scc1 L1_noidle")
        for i in range(NW):
            a("s_barrier")
        a.label("L1_noidle")
    for i in range(NW):
        slot = (i % 4) * SLOT
        a("s_barrier")
        stamp(a)
        if STAG:
            a(f"v_add_u32 v{cE}, s44, v{aWE}")
            a(f"v_add_u32 v{cO}, s44, v{aWO}")
            a(f"s_add_u32 s44, s44, {SLOT}")
            a(f"s_cmp_eq_u32 s44, {3 * SLOT}")
            a("s_cselect_b32 s44, 0, s44")
        else:
            a(f"v_add_u32 v{cE}, {slot}, v{aWE}")
            a(f"v_add_u32 v{cO}, {slot}, v{aWO}")
        if i + XD < NW:
            xloads(i + XD)
        a(f"s_waitcnt vmcnt({4 * (min(i + XD, NW - 1) - i)})")
        items = []
        f = 0
        for s in range(4):
            for t in range(6):
                fr = AF + 4 * (f % 12)
                areg = cE if t % 2 == 0 else cO
                reads = []
                for half in range(2):
                    off = (16 * s + 4 * half) * 384 + 128 * (t >> 1)
                    reads.append(f"ds_read_b64_tr_b16 {vr(fr + 2 * half, 2)}, v{areg} offset:{off}")
                acc = vr(OA + 16 * t, 16)
                c = "0" if (i == 0 and s == 0) else acc
                m = f"v_mfma_f32_32x32x16_bf16 {acc}, {vr(fr, 4)}, {vr(XB[i % 4] + 4 * s, 4)}, {c}"
                items.append((reads, m))
                f += 1
        rolling(a, items, 6)
    stamp(a)
    a("s_nop 15")
    for t in range(6):
        for g2 in range(2):
            fq = QF + 4 * (2 * t + g2)
            src = OA + 16 * t + 8 * g2
            for k in range(4):
                a(f"v_cvt_pk_bf16_f32 v{fq + k}, v{src + 2 * k}, v{src + 2 * k + 1}")
    a("s_nop 1")
    for ks in range(12):
        fq = QF + 4 * ks
        a(f"v_permlane32_swap_b32 v{fq}, v{fq + 2}")
        a(f"v_permlane32_swap_b32 v{fq + 1}, v{fq + 3}")
    for r in range(96):
        a(f"v_mov_b32 v{OA + r}, 0")
    a("s_mov_b32 s48, 0")

    stamp(a)
    a.label("L1_kv_loop")
    a("s_barrier")
    for q4 in range(4):
        a(f"v_add_u32 v{cK + q4}, s47, v{aK + q4}")
    a(f"v_add_u32 v{cE}, s47, v{aVE}")
    a(f"v_add_u32 v{cO}, s47, v{aVO}")
    for s in range(12):
        a(f"ds_read_b128 {vr(AF + 4 * s, 4)}, v{cK + (s & 3)} offset:{128 * (s >> 2)}")
    sacc = vr(SA, 16)
    for s in range(12):
        a(f"s_waitcnt lgkmcnt({11 - s})")
        c = "0" if s == 0 else sacc
        a(f"v_mfma_f32_32x32x16_bf16 {sacc}, {vr(AF + 4 * s, 4)}, {vr(QF + 4 * s, 4)}, {c}")
    vitems = []
    for f in range(12):
        s, t = f // 6, f % 6
        fr = AF + 4 * f
        areg = cE if t % 2 == 0 else cO
        reads = []
        for half in range(2):
            off = 12288 + (16 * s + 8 * half) * 384 + 128 * (t >> 1)
            reads.append(f"ds_read_b64_tr_b16 {vr(fr + 2 * half, 2)}, v{areg} offset:{off}")
        acc = vr(OA + 16 * t, 16)
        m = f"v_mfma_f32_32x32x16_bf16 {acc}, {vr(fr, 4)}, {vr(PF + 4 * s, 4)}, {acc}"
        vitems.append((reads, m))
    for f in range(6):
        for r in vitems[f][0]:
            a(r)
    a("s_nop 3")
    a(f"v_max3_f32 v{vT0}, v{SA}, v{SA + 1}, v{SA + 2}")
    a(f"v_max3_f32 v{vT1}, v{SA + 3}, v{SA + 4}, v{SA + 5}")
    a(f"v_max3_f32 v{vT0}, v{vT0}, v{SA + 6}, v{SA + 7}")
    a(f"v_max3_f32 v{vT1}, v{vT1}, v{SA + 8}, v{SA + 9}")
    a(f"v_max3_f32 v{vT0}, v{vT0}, v{SA + 10}, v{SA + 11}")
    a(f"v_max3_f32 v{vT1}, v{vT1}, v{SA + 12}, v{SA + 13}")
    a(f"v_max3_f32 v{vT0}, v{vT0}, v{SA + 14}, v{SA + 15}")
    a(f"v_max3_f32 v{vT0}, v{vT0}, v{vT1}, v{vM}")
    a(f"v_mov_b32 v{vT1}, v{vT0}")
    a("s_nop 1")
    a(f"v_permlane32_swap_b32 v{vT0}, v{vT1}")
    a("s_nop 1")
    a(f"v_max_f32 v{vT0}, v{vT0}, v{vT1}")
    a(f"v_sub_f32 v{vT1}, v{vM}, v{vT0}")
    a(f"v_mul_f32 v{vT1}, s49, v{vT1}")
    a(f"v_exp_f32 v{vAl}, v{vT1}")
    a(f"v_mov_b32 v{vM}, v{vT0}")
    a(f"v_mul_f32 v{vMC}, s49, v{vT0}")
    a(f"v_mov_b32 v{vAl + 1}, v{vAl}")
    for r in range(16):
        a(f"v_fma_f32 v{SA + r}, v{SA + r}, s49, -v{vMC}")
    for r in range(16):
        a(f"v_exp_f32 v{SA + r}, v{SA + r}")
    for r in range(48):
        a(f"v_pk_mul_f32 {vr(OA + 2 * r, 2)}, {vr(OA + 2 * r, 2)}, {vr(vAl, 2)}")
    a(f"v_add_f32 v{vPS}, v{SA}, v{SA + 1}")
    a(f"v_add_f32 v{vT0}, v{SA + 2}, v{SA + 3}")
    for r in range(4, 16, 2):
        a(f"v_add_f32 v{vPS}, v{vPS}, v{SA + r}")
        a(f"v_add_f32 v{vT0}, v{vT0}, v{SA + r + 1}")
    a(f"v_add_f32 v{vPS}, v{vPS}, v{vT0}")
    a(f"v_fma_f32 v{vL}, v{vL}, v{vAl}, v{vPS}")
    for k in range(8):
        a(f"v_cvt_pk_bf16_f32 v{PF + k}, v{SA + 2 * k}, v{SA + 2 * k + 1}")
    a("s_nop 1")
    for f in range(12):
        if f + 6 < 12:
            for r in vitems[f + 6][0]:
                a(r)
        last = min(f + 6, 11)
        a(f"s_waitcnt lgkmcnt({2 * (last - f)})")
        a(vitems[f][1])
    a("s_mov_b32 s46, s47")
    a("s_mov_b32 s47, s52")
    a("s_mov_b32 s52, s53")
    a("s_mov_b32 s53, s46")
    a("s_add_u32 s48, s48, 1")
    a(f"s_cmp_lt_u32 s48, {NKV}")
    a("s_cbranch_scc1 L1_kv_loop")

    stamp(a)
    a(f"v_mov_b32 v{vT1}, v{vL}")
    a("s_nop 1")
    a(f"v_permlane32_swap_b32 v{vL}, v{vT1}")
    a("s_nop 1")
    a(f"v_add_f32 v{vL}, v{vL}, v{vT1}")
    a(f"v_rcp_f32 v{vAl}, v{vL}")
    a("s_nop 7")
    a(f"v_mov_b32 v{vAl + 1}, v{vAl}")
    for r in range(48):
        a(f"v_pk_mul_f32 {vr(OA + 2 * r, 2)}, {vr(OA + 2 * r, 2)}, {vr(vAl, 2)}")
    for t in range(6):
        for g2 in range(2):
            fq = QF + 4 * (2 * t + g2)
            src = OA + 16 * t + 8 * g2
            for k in range(4):
                a(f"v_cvt_pk_bf16_f32 v{fq + k}, v{src + 2 * k}, v{src + 2 * k + 1}")
    a("s_nop 1")
    for ks in range(12):
        fq = QF + 4 * ks
        a(f"v_permlane32_swap_b32 v{fq}, v{fq + 2}")
        a(f"v_permlane32_swap_b32 v{fq + 1}, v{fq + 3}")
    a("s_nop 1")
    a("s_mov_b32 s45, 4096")
    a("s_mov_b32 s46, 8192")
    for ks in range(12):
        fq = QF + 4 * ks
        so = ["0", "s45", "s46"][ks >> 2]
        a(f"buffer_store_dwordx4 {vr(fq, 4)}, v{vOO}, s[24:27], {so} offen offset:{1024 * (ks & 3)} {P_OST}")
    if STAMP:
        a("s_waitcnt vmcnt(0)")
        stamp(a)
        a("s_waitcnt lgkmcnt(0)")
        a(f"s_cmp_eq_u32 s2, {STAMPWG}")
        a("s_cbranch_scc0 L1_end")
        a("s_cmp_eq_u32 s40, 0")
        a("s_cbranch_scc0 L1_end")
        a("s_cmp_eq_u32 s3, 0")
        a("s_cbranch_scc0 L1_end")
        srd(a, 50, 256, 56)
        a("v_mov_b32 v1, 0")
        for k in range(_stamp_n[0]):
            a(f"s_sub_u32 s55, s{60 + 2 * k}, s60")
            a("v_mov_b32 v3, s55")
            a(f"buffer_store_dword v3, v1, s[56:59], 0 offen offset:{4 * k}")
    a.label("L1_end")
    a("s_endpgm")


K2 = "oproj_kernel"
S2 = 16384
NS2 = 8
NST2 = 24
OD2 = 7
PART_OFF = 18874368
PART_SLICE = 3932160


def gen_oproj(a):
    a.raw(f".globl {K2}")
    a.raw(".p2align 8")
    a.raw(f".type {K2},@function")
    a.label(K2)
    a("s_cmp_ge_u32 s2, 240")
    a("s_cbranch_scc1 L2_end")
    a("s_load_dwordx2 s[28:29], s[0:1], 32")
    a("s_load_dwordx2 s[30:31], s[0:1], 56")
    a("s_load_dwordx2 s[50:51], s[0:1], 48")
    a("s_load_dwordx2 s[34:35], s[0:1], 40")
    _stamp_n[0] = 0
    stamp(a, STAMP2)
    a("v_lshrrev_b32 v1, 6, v0")
    a("v_and_b32 v2, 63, v0")
    a("v_readfirstlane_b32 s40, v1")
    a("s_and_b32 s38, s2, 3")
    a("s_lshr_b32 s39, s2, 3")
    a("s_bfe_u32 s41, s2, 0x10002")
    a("s_mul_i32 s41, s41, 30")
    a("s_add_u32 s39, s39, s41")
    a("s_mul_i32 s41, s39, 0xcccd")
    a("s_lshr_b32 s41, s41, 18")
    a("s_mul_i32 s42, s41, 5")
    a("s_sub_u32 s42, s39, s42")
    a("s_waitcnt lgkmcnt(0)")
    srd(a, 28, 7864320, 8)
    srd(a, 30, 18874368, 12)
    a(f"s_add_u32 s32, s30, {PART_OFF}")
    a("s_addc_u32 s33, s31, 0")
    srd(a, 32, 4 * PART_SLICE, 16)
    srd(a, 50, 256, 20)
    srd(a, 34, 1966080, 24)
    a("s_cmp_ge_u32 s40, 4")
    a("s_cbranch_scc0 L2_compute")
    a("v_lshrrev_b32 v3, 4, v2")
    a("v_and_b32 v4, 15, v2")
    a("v_lshlrev_b32 v5, 2, v3")
    a("v_xor_b32 v4, v4, v5")
    a("v_lshlrev_b32 v4, 4, v4")
    a("v_mul_u32_u24 v5, 0x500, v3")
    a("v_add_u32 v10, v4, v5")
    a("s_sub_u32 s43, s40, 4")
    a("s_mul_i32 s45, s38, 1966080")
    a("s_lshl_b32 s46, s42, 8")
    a("s_add_u32 s45, s45, s46")
    a("s_mul_i32 s46, s43, 40960")
    a("s_add_u32 s45, s45, s46")
    a("s_lshl_b32 s44, s43, 13")

    def issue(i):
        a(f"s_add_u32 m0, s44, {(i % NS2) * S2}")
        a("s_nop 0")
        for jj in range(8):
            a(f"buffer_load_dwordx4 v10, s[8:11], s45 offen {P_WO} lds")
            a("s_add_u32 m0, m0, 0x400")
            a(f"s_add_u32 s45, s45, {5120 if jj < 7 else 5120 + 40960}")

    for i in range(6):
        issue(i)
    nissued = 6
    for n in range(NST2 // 2):
        a(f"s_waitcnt vmcnt({8 * (nissued - 2 * n - 2)})")
        a("s_barrier")
        for _ in range(2):
            if nissued < NST2:
                issue(nissued)
                nissued += 1
    a("s_endpgm")
    OB = [16 + 16 * i for i in range(8)]
    AC = 144
    AF = 208
    aW = 10
    vXO, vPO = 14, 15
    a.label("L2_compute")
    a("v_and_b32 v3, 15, v2")
    a("v_lshrrev_b32 v4, 5, v2")
    a("v_and_b32 v5, 31, v2")
    a("v_lshrrev_b32 v6, 4, v2")
    a("v_and_b32 v6, 1, v6")
    a("v_lshrrev_b32 v7, 2, v3")
    a("v_and_b32 v8, 3, v3")
    a("v_lshlrev_b32 v8, 3, v8")
    a("v_lshl_add_u32 v8, v6, 5, v8")
    a("v_lshl_add_u32 v9, v4, 3, v7")
    a("v_lshl_add_u32 v8, v9, 8, v8")
    for t in range(4):
        a(f"v_xor_b32 v9, {t}, v7")
        a(f"v_lshl_add_u32 v{aW + t}, v9, 6, v8")
    a("s_lshl_b32 s45, s41, 7")
    a("s_lshl_b32 s46, s40, 5")
    a("s_add_u32 s45, s45, s46")
    a("v_add_u32 v9, s45, v5")
    a("s_lshr_b32 s46, s45, 5")
    a("s_mul_i32 s46, s46, 384")
    a("s_mul_i32 s47, s38, 96")
    a("s_add_u32 s46, s46, s47")
    a("s_lshl_b32 s48, s46, 10")
    a(f"v_lshlrev_b32 v{vXO}, 4, v2")
    if FUSERED:
        a("s_lshl_b32 s47, s39, 2")
        a("s_add_u32 s47, s47, s40")
        a("s_lshl_b32 s47, s47, 16")
        a(f"v_lshlrev_b32 v{vPO}, 4, v2")
        a(f"v_add_u32 v{vPO}, s47, v{vPO}")
        a("v_mul_u32_u24 v7, 0x500, v9")
        a("v_lshl_add_u32 v7, v4, 4, v7")
        a("s_lshl_b32 s46, s42, 8")
        a("s_lshl_b32 s47, s38, 6")
        a("s_add_u32 s46, s46, s47")
        a("v_add_u32 v7, s46, v7")
    else:
        a(f"s_mul_i32 s46, s38, {PART_SLICE}")
        a("s_lshl_b32 s47, s39, 2")
        a("s_add_u32 s47, s47, s40")
        a("s_lshl_b32 s47, s47, 14")
        a("s_add_u32 s46, s46, s47")
        a(f"v_lshlrev_b32 v{vPO}, 4, v2")
        a(f"v_add_u32 v{vPO}, s46, v{vPO}")
    for t in range(4):
        a(f"v_add_u32 v{3 + t}, 0x10000, v{aW + t}")

    def oloads(i):
        for s in range(4):
            a(f"buffer_load_dwordx4 {vr(OB[i % 8] + 4 * s, 4)}, v{vXO}, s[12:15], s48 offen offset:{1024 * s} {P_OLD}")
        a("s_add_u32 s48, s48, 4096")

    if PTOUCH:
        a(f"buffer_load_dword v8, v{vPO}, s[16:19], 0 offen")
    for i in range(OD2):
        oloads(i)
    fcount = 0
    for i in range(NST2):
        sl = i % NS2
        abase = aW if sl < 4 else 3
        slot = (sl % 4) * S2
        if i % 2 == 0:
            a("s_barrier")
            stamp(a, STAMP2)
        if i + OD2 < NST2:
            oloads(i + OD2)
        a(f"s_waitcnt vmcnt({4 * (min(i + OD2, NST2 - 1) - i)})")
        items = []
        for s in range(4):
            for t in range(4):
                fr = AF + 4 * (fcount % 12)
                fcount += 1
                reads = []
                for half in range(2):
                    off = slot + (16 * s + 4 * half) * 256
                    reads.append(f"ds_read_b64_tr_b16 {vr(fr + 2 * half, 2)}, v{abase + t} offset:{off}")
                acc = vr(AC + 16 * t, 16)
                c = "0" if (i == 0 and s == 0) else acc
                m = f"v_mfma_f32_32x32x16_bf16 {acc}, {vr(fr, 4)}, {vr(OB[i % 8] + 4 * s, 4)}, {c}"
                items.append((reads, m))
        rolling(a, items, 6)
    a("s_nop 15")
    if FUSERED:
        a("s_lshl_b32 s46, s38, 12")
        for t in range(4):
            a(f"s_add_u32 s45, s46, {16384 * t}")
            for q in range(4):
                a(f"buffer_store_dwordx4 {vr(AC + 16 * t + 4 * q, 4)}, v{vPO}, s[16:19], s45 offen offset:{1024 * q} {FSC}")
        a("s_waitcnt vmcnt(0)")
        a("s_barrier")
        a("s_cmp_eq_u32 s40, 0")
        a("s_cbranch_scc0 L2_wait")
        if FUSERED == 2:
            a("buffer_wbl2 sc1")
            a("s_waitcnt vmcnt(0)")
        a("s_mov_b64 exec, 1")
        a("s_lshl_b32 s45, s39, 2")
        a("v_mov_b32 v16, s45")
        a("v_mov_b32 v17, 1")
        a("buffer_atomic_add v17, v16, s[20:23], 0 offen sc1")
        a("s_mov_b32 s46, 0")
        a.label("L2_poll")
        a("buffer_load_dword v18, v16, s[20:23], 0 offen sc1")
        a("s_waitcnt vmcnt(0)")
        a("v_readfirstlane_b32 s45, v18")
        a("s_add_u32 s46, s46, 1")
        a("s_cmp_ge_u32 s45, 4")
        a("s_cbranch_scc1 L2_polldone")
        a("s_sleep 1")
        a("s_cmp_lt_u32 s46, 0x400000")
        a("s_cbranch_scc1 L2_poll")
        a.label("L2_polldone")
        a("s_mov_b64 exec, -1")
        if FUSERED == 2:
            a("buffer_inv sc1")
            a("s_waitcnt vmcnt(0)")
        a.label("L2_wait")
        a("s_barrier")
        a("s_lshl_b32 s46, s38, 14")
        for src in range(4):
            a(f"s_add_u32 s45, s46, {4096 * src}")
            for q in range(4):
                a(f"buffer_load_dwordx4 {vr(16 + 16 * src + 4 * q, 4)}, v{vPO}, s[16:19], s45 offen offset:{1024 * q} {FSC}")
        for src in range(1, 4):
            a(f"s_waitcnt vmcnt({4 * (3 - src)})")
            for e in range(16):
                a(f"v_add_f32 v{16 + e}, v{16 + e}, v{16 + 16 * src + e}")
        for e in range(8):
            a(f"v_cvt_pk_bf16_f32 v{32 + e}, v{16 + 2 * e}, v{17 + 2 * e}")
        a("s_nop 1")
        for g2 in range(2):
            a(f"v_permlane32_swap_b32 v{32 + 4 * g2}, v{34 + 4 * g2}")
            a(f"v_permlane32_swap_b32 v{33 + 4 * g2}, v{35 + 4 * g2}")
        a("s_nop 1")
        for g2 in range(2):
            a(f"buffer_store_dwordx4 {vr(32 + 4 * g2, 4)}, v7, s[24:27], 0 offen offset:{32 * g2}")
    else:
      for t in range(4):
        a(f"s_mov_b32 s45, {4096 * t}")
        for q in range(4):
            a(f"buffer_store_dwordx4 {vr(AC + 16 * t + 4 * q, 4)}, v{vPO}, s[16:19], s45 offen offset:{1024 * q} {P_PART}")
    if STAMP2:
        stamp(a, STAMP2)
        a("s_waitcnt vmcnt(0)")
        stamp(a, STAMP2)
        a("s_waitcnt lgkmcnt(0)")
        a(f"s_cmp_eq_u32 s2, {STAMPWG}")
        a("s_cbranch_scc0 L2_end")
        a("s_cmp_eq_u32 s40, 0")
        a("s_cbranch_scc0 L2_end")
        srd(a, 50, 256, 56)
        a("v_mov_b32 v1, 0")
        for k in range(_stamp_n[0]):
            a(f"s_sub_u32 s55, s{60 + 2 * k}, s60")
            a("v_mov_b32 v3, s55")
            a(f"buffer_store_dword v3, v1, s[56:59], 0 offen offset:{4 * k}")
    a.label("L2_end")
    a("s_endpgm")


K3 = "reduce_kernel"


def gen_reduce(a):
    a.raw(f".globl {K3}")
    a.raw(".p2align 8")
    a.raw(f".type {K3},@function")
    a.label(K3)
    a("s_cmp_ge_u32 s2, 960")
    a("s_cbranch_scc1 L3_end")
    a("s_load_dwordx2 s[28:29], s[0:1], 40")
    a("s_load_dwordx2 s[30:31], s[0:1], 56")
    a("s_lshl_b32 s3, s2, 8")
    a("v_add_u32 v1, s3, v0")
    a("v_lshlrev_b32 v2, 4, v1")
    a("s_lshr_b32 s39, s2, 4")
    a("s_mul_i32 s41, s39, 0xcccd")
    a("s_lshr_b32 s41, s41, 18")
    a("s_mul_i32 s42, s41, 5")
    a("s_sub_u32 s42, s39, s42")
    a("s_lshr_b32 s43, s2, 2")
    a("s_and_b32 s43, s43, 3")
    a("s_and_b32 s44, s2, 3")
    a("s_lshl_b32 s45, s41, 7")
    a("s_lshl_b32 s46, s43, 5")
    a("s_add_u32 s45, s45, s46")
    a("s_lshl_b32 s46, s42, 7")
    a("s_lshl_b32 s47, s44, 5")
    a("s_add_u32 s46, s46, s47")
    a("v_and_b32 v3, 31, v0")
    a("v_add_u32 v3, s45, v3")
    a("v_mul_u32_u24 v3, 0x500, v3")
    a("v_lshrrev_b32 v4, 6, v0")
    a("v_lshlrev_b32 v4, 3, v4")
    a("v_bfe_u32 v5, v0, 5, 1")
    a("v_lshl_add_u32 v4, v5, 2, v4")
    a("v_add_u32 v4, s46, v4")
    a("v_lshl_add_u32 v3, v4, 1, v3")
    a("s_waitcnt lgkmcnt(0)")
    srd(a, 28, 1966080, 8)
    a(f"s_add_u32 s32, s30, {PART_OFF}")
    a("s_addc_u32 s33, s31, 0")
    srd(a, 32, 4 * PART_SLICE, 12)
    for k in range(1, 4):
        a(f"s_mov_b32 s{36 + k}, {k * PART_SLICE}")
    for k in range(4):
        so = "0" if k == 0 else f"s{36 + k}"
        a(f"buffer_load_dwordx4 {vr(8 + 4 * k, 4)}, v2, s[12:15], {so} offen {P_RED}")
    a("s_waitcnt vmcnt(2)")
    for e in range(4):
        a(f"v_add_f32 v{8 + e}, v{8 + e}, v{12 + e}")
    a("s_waitcnt vmcnt(0)")
    for e in range(4):
        a(f"v_add_f32 v{16 + e}, v{16 + e}, v{20 + e}")
    for e in range(4):
        a(f"v_add_f32 v{8 + e}, v{8 + e}, v{16 + e}")
    for e in range(2):
        a(f"v_cvt_pk_bf16_f32 v{6 + e}, v{8 + 2 * e}, v{9 + 2 * e}")
    a("buffer_store_dwordx2 v[6:7], v3, s[8:11], 0 offen")
    a.label("L3_end")
    a("s_endpgm")


def kd(name, vgpr, sgpr=102):
    acc = (vgpr + 3) // 4 * 4
    return f""".p2align 6
.amdhsa_kernel {name}
  .amdhsa_next_free_vgpr {vgpr}
  .amdhsa_next_free_sgpr {sgpr}
  .amdhsa_accum_offset {acc}
  .amdhsa_group_segment_fixed_size 0
  .amdhsa_kernarg_size 64
  .amdhsa_user_sgpr_count 2
  .amdhsa_user_sgpr_kernarg_segment_ptr 1
  .amdhsa_system_sgpr_workgroup_id_x 1
.end_amdhsa_kernel
"""


def main():
    a = Asm()
    out = HEADER
    out += f"; @launch kernel={MAIN} grid=(256,1,1) block=(512,1,1) lds={SLOT * 6}\n"
    out += f"; @launch kernel={K2} grid=(240,1,1) block=(384,1,1) lds={S2 * NS2}\n"
    if not FUSERED:
        out += f"; @launch kernel={K3} grid=(960,1,1) block=(256,1,1) lds=0\n"
    out += '.amdgcn_target "amdgcn-amd-amdhsa--gfx950"\n.text\n'
    gen_attn(a)
    gen_oproj(a)
    if not FUSERED:
        gen_reduce(a)
    out += a.text()
    out += '.section .rodata,"a"\n'
    out += kd(MAIN, 256)
    out += kd(K2, 256)
    if not FUSERED:
        out += kd(K3, 24)
    open(OUT, "w").write(out)
    print("wrote", OUT, len(out), "bytes")


if __name__ == "__main__":
    main()
```
